```python
import torch

def _softmax(x, axis=-1):
    return torch.softmax(x, dim=axis)
def _gelu(x):
    return torch.nn.functional.gelu(x, approximate="tanh")
def _silu(x):
    return torch.nn.functional.silu(x)
def _sigmoid(x):
    return torch.sigmoid(x)
def _layernorm(x, axis=-1, eps=1e-5):
    m = x.mean(dim=axis, keepdim=True)
    v = x.var(dim=axis, keepdim=True, unbiased=False)
    return (x - m) / torch.sqrt(v + eps)
def _scatter_add(tgt, idx, src, axis=0):
    return tgt.clone().index_add_(axis, idx, src)
def _segment_sum(src, seg, n):
    out = torch.zeros((n,) + src.shape[1:], dtype=src.dtype)
    return out.index_add_(0, seg, src)
def _pad(x, pw):
    flat = tuple(v for pair in reversed(pw) for v in pair)
    return torch.nn.functional.pad(x, flat)

kernel_name = 'recurrent_scan__mha_block_cached__dense_activation_gelu__decode'

def setup_inputs():

    _w = (lambda a: (lambda t: t.to(torch.bfloat16) if t.is_floating_point() else t)(torch.as_tensor(a)))
    def _A_setup():
        B, Sq, D = 8, 1, 640
        H, Sk, Dh = 32, 4096, 128
        return {
            "x": _w((lambda *s: torch.randn(*s, dtype=torch.bfloat16) * 0.1)(B, Sq, D)),
            "k_cache": _w((lambda *s: torch.randn(*s, dtype=torch.bfloat16) * 0.8)(B, H, Sk, Dh)),
            "v_cache": _w((lambda *s: torch.randn(*s, dtype=torch.bfloat16) * 3.2)(B, H, Sk, Dh)),
            "wq": _w((lambda *s: torch.randn(*s, dtype=torch.bfloat16) * 0.8)(D, H * Dh) * (D ** -0.5)),
            "wo": _w((lambda *s: torch.randn(*s, dtype=torch.bfloat16) * 3.2)(H * Dh, D) * ((H * Dh) ** -0.5)),
        }
    _A_in = _A_setup()

    def _B_setup():
        B, S, D, F = 8, 1, 640, 1728
        return {
            "x": _w((lambda *s: torch.randn(*s, dtype=torch.bfloat16) * 0.1)(B, S, D)),
            "w1": _w((lambda *s: torch.randn(*s, dtype=torch.bfloat16) * 3.2)(D, F) * (D ** -0.5)),
            "b1": _w((lambda *s: torch.randn(*s, dtype=torch.bfloat16) * 3.2)(F) * 0.01),
            "w2": _w((lambda *s: torch.randn(*s, dtype=torch.bfloat16) * 3.2)(F, D) * (F ** -0.5)),
            "b2": _w((lambda *s: torch.randn(*s, dtype=torch.bfloat16) * 3.2)(D) * 0.01),
        }
    _B_in = _B_setup()

    return {
        "A_x": _A_in["x"],
        "A_k_cache": _A_in["k_cache"],
        "A_v_cache": _A_in["v_cache"],
        "A_wq": _A_in["wq"],
        "A_wo": _A_in["wo"],
        "B_x": _B_in["x"],
        "B_w1": _B_in["w1"],
        "B_b1": _B_in["b1"],
        "B_w2": _B_in["w2"],
        "B_b2": _B_in["b2"],
    }

def reference(A_x, A_k_cache, A_v_cache, A_wq, A_wo, B_x, B_w1, B_b1, B_w2, B_b2):
    def _A_ref(x, k_cache, v_cache, wq, wo):
        B, Sq, D = x.shape
        H, Dh = 32, 128
        q = (lambda x, *d: x.permute(*d))((x @ wq).reshape(B, Sq, H, Dh), 0, 2, 1, 3)
        scores = torch.einsum("bhqd,bhkd->bhqk", q, k_cache) * (Dh ** -0.5)
        p = _softmax(scores, axis=-1)
        o = torch.einsum("bhqk,bhkd->bhqd", p, v_cache)
        return (lambda x, *d: x.permute(*d))(o, 0, 2, 1, 3).reshape(B, Sq, H * Dh) @ wo

    def _B_ref(x, w1, b1, w2, b2):
        h = torch.einsum("bsd,df->bsf", x, w1) + b1
        h = _gelu(h)
        return torch.einsum("bsf,fd->bsd", h, w2) + b2

    x = A_x
    xn = _layernorm(x, axis=-1)
    s = _A_ref(xn, A_k_cache, A_v_cache, A_wq, A_wo)
    g = _silu(_B_ref(xn, B_w1, B_b1, B_w2, B_b2))
    return x + s * g
```

```python
import sys, struct

NAME = "recurrent_scan__mha_block_cached__dense_activation_gelu__decode"

def f32(x):
    return "0x%08x" % struct.unpack("<I", struct.pack("<f", x))[0]

LOG2E = f32(1.4426950408889634)
SCALE = f32(128 ** -0.5)
INV640 = f32(1.0 / 640)
EPS = f32(1e-5)

OPT = dict(ring=8, nt=1, interleave=1)
for a in sys.argv[2:]:
    k, v = a.split("=")
    OPT[k] = int(v)
R = OPT["ring"]
NT = " nt" if OPT["nt"] else ""

L_XN = 0
L_QP = 20480
L_QB = 28672
L_ML = 28928
L_FLAG = 29056
L_OB = 29184
L_H = 30720
L_BIG = 32768
LDS_BYTES = 32768 + 81920

WS_BATCH = 59 * 2560

lines = []
def e(s):
    lines.append("    " + s)
def lab(s):
    lines.append(s + ":")
def c(s):
    lines.append("    ; " + s)

sK, sV, sX, sWQ, sWO, sW1, sW2, sWS = 44, 48, 52, 56, 60, 64, 68, 72

def srd(s, lo, hi, nrec):
    e(f"s_mov_b32 s{s}, s{lo}")
    e(f"s_and_b32 s{s+1}, s{hi}, 0xffff")
    e(f"s_mov_b32 s{s+2}, {nrec}")
    e(f"s_mov_b32 s{s+3}, 0x00020000")

vLANE, vG, vN = 1, 2, 3
vM = 4
vM8 = 8
vKV = 12
vQ = 16
vS = 20
vO = 24
vA = 28
vT = 36
vRING = 48
vW = 48 + 4 * R
vACC = vW + 40
vPACC = vRING

def bf16r(dst, src, tmp=None):
    e(f"v_cvt_pk_bf16_f32 v{dst}, v{src}, v{src}")
    e(f"v_and_b32 v{dst}, 0xffff0000, v{dst}")

def row_allreduce(op, v, t):
    for sh in (8, 4, 2, 1):
        e("s_nop 1")
        e(f"{op}_dpp v{v}, v{v}, v{v} row_ror:{sh} row_mask:0xf bank_mask:0xf")

def wave_allreduce(op, v):
    row_allreduce(op, v, None)
    e("s_nop 1")
    e(f"v_readlane_b32 s8, v{v}, 0")
    e(f"v_readlane_b32 s9, v{v}, 16")
    e(f"v_readlane_b32 s10, v{v}, 32")
    e(f"v_readlane_b32 s11, v{v}, 48")
    e("s_nop 1")
    e(f"v_mov_b32 v{v}, s8")
    e(f"{op} v{v}, s9, v{v}")
    e(f"{op} v{v}, s10, v{v}")
    e(f"{op} v{v}, s11, v{v}")

hdr = open("cdna_kernels/%s.s.ref" % NAME).read().split("; Override launch")[0]
out = hdr
out += f"; @launch grid=(256,1,1) block=(1024,1,1) lds={LDS_BYTES}\n"
out += f""".amdgcn_target "amdgcn-amd-amdhsa--gfx950"
.text
.globl {NAME}_kernel
.p2align 8
.type {NAME}_kernel,@function
{NAME}_kernel:
"""

e("s_cmp_ge_u32 s2, 256")
e("s_cbranch_scc1 L_end")
e("s_load_dwordx16 s[16:31], s[0:1], 0")
e("s_load_dwordx8 s[32:39], s[0:1], 64")
e("s_load_dwordx2 s[40:41], s[0:1], 96")
e(f"v_and_b32 v{vLANE}, 63, v0")
e("v_lshrrev_b32 v2, 6, v0")
e("s_nop 0")
e("v_readfirstlane_b32 s3, v2")
e(f"v_lshrrev_b32 v{vG}, 4, v{vLANE}")
e(f"v_and_b32 v{vN}, 15, v{vLANE}")
e("s_lshr_b32 s4, s2, 5")
e("s_and_b32 s5, s2, 31")
e("s_mov_b32 s7, 0")
e(f"v_and_b32 v{vT}, 7, v{vN}")
e(f"v_mov_b32 v{vT+1}, 0xffff")
e(f"v_mov_b32 v{vT+2}, 0xffff0000")
for r in range(4):
    for (dst, src) in ((vM + r, vN), (vM8 + r, vT)):
        e(f"v_mov_b32 v{dst}, 0")
        e(f"v_cmp_eq_u32 vcc, {2*r}, v{src}")
        e("s_nop 1")
        e(f"v_cndmask_b32 v{dst}, v{dst}, v{vT+1}, vcc")
        e(f"v_cmp_eq_u32 vcc, {2*r+1}, v{src}")
        e("s_nop 1")
        e(f"v_cndmask_b32 v{dst}, v{dst}, v{vT+2}, vcc")
e("s_waitcnt lgkmcnt(0)")
e("s_lshl_b32 s8, s2, 20")
e("s_add_u32 s10, s18, s8")
e("s_addc_u32 s11, s19, 0")
srd(sK, 10, 11, 1 << 20)
e("s_add_u32 s10, s20, s8")
e("s_addc_u32 s11, s21, 0")
srd(sV, 10, 11, 1 << 20)
srd(sX, 16, 17, 10240)
e("s_lshl_b32 s8, s5, 8")
e("s_add_u32 s10, s22, s8")
e("s_addc_u32 s11, s23, 0")
srd(sWQ, 10, 11, 0)
e(f"s_sub_u32 s{sWQ+2}, {640*8192}, s8")
e("s_mul_i32 s8, s5, 163840")
e("s_add_u32 s10, s24, s8")
e("s_addc_u32 s11, s25, 0")
srd(sWO, 10, 11, 163840)

vX = vT + 4
e("s_and_b32 s8, s3, 7")
e("s_mul_i32 s8, s8, 1280")
e(f"v_lshlrev_b32 v{vT}, 4, v{vLANE}")
e(f"v_lshlrev_b32 v{vT+1}, 2, v{vLANE}")
e(f"buffer_load_dwordx4 v[{vX}:{vX+3}], v{vT}, s[{sX}:{sX+3}], s8 offen")
e(f"buffer_load_dword v{vX+4}, v{vT+1}, s[{sX}:{sX+3}], s8 offen offset:1024")
e("s_mul_i32 s8, s3, 40")
e(f"v_add_u32 v{vT+2}, s8, v{vG}")
e(f"v_lshlrev_b32 v{vT+2}, 13, v{vT+2}")
e(f"v_lshl_add_u32 v{vT+2}, v{vN}, 4, v{vT+2}")
for i in range(10):
    e(f"s_mov_b32 s6, {i*32768}")
    e(f"buffer_load_dwordx4 v[{vW+4*i}:{vW+4*i+3}], v{vT+2}, s[{sWQ}:{sWQ+3}], s6 offen")
if OPT["interleave"]:
    e("s_lshl_b32 s8, s3, 10")
    def kv_soff(i): return i * 16384
else:
    e("s_lshl_b32 s8, s3, 16")
    def kv_soff(i): return i * 1024
e(f"v_lshlrev_b32 v{vKV}, 4, v{vLANE}")
e(f"v_add_u32 v{vKV}, s8, v{vKV}")

def issue_kv(j):
    s = sK if j < 64 else sV
    i = j % 64
    r = vRING + 4 * (j % R)
    e(f"s_mov_b32 s6, {kv_soff(i)}")
    e(f"buffer_load_dwordx4 v[{r}:{r+3}], v{vKV}, s[{s}:{s+3}], s6 offen{NT}")

for j in range(R):
    issue_kv(j)

e(f"s_waitcnt vmcnt({10+R})")
U = [vA + k for k in range(8)] + [vT + 9, vT + 10]
for k in range(5):
    e(f"v_lshlrev_b32 v{U[2*k]}, 16, v{vX+k}")
    e(f"v_and_b32 v{U[2*k+1]}, 0xffff0000, v{vX+k}")
vSum = vT
e(f"v_add_f32 v{vSum}, v{U[0]}, v{U[1]}")
for k in range(2, 10):
    e(f"v_add_f32 v{vSum}, v{vSum}, v{U[k]}")
wave_allreduce("v_add_f32", vSum)
e(f"v_mul_f32 v{vSum}, {INV640}, v{vSum}")
vVar = vT + 1
vD = vT + 2
e(f"v_sub_f32 v{vD}, v{U[0]}, v{vSum}")
e(f"v_mul_f32 v{vVar}, v{vD}, v{vD}")
for k in range(1, 10):
    e(f"v_sub_f32 v{vD}, v{U[k]}, v{vSum}")
    e(f"v_fmac_f32 v{vVar}, v{vD}, v{vD}")
wave_allreduce("v_add_f32", vVar)
e(f"v_mul_f32 v{vVar}, {INV640}, v{vVar}")
bf16r(vSum, vSum)
bf16r(vVar, vVar)
e(f"v_add_f32 v{vVar}, {EPS}, v{vVar}")
bf16r(vVar, vVar)
e(f"v_sqrt_f32 v{vVar}, v{vVar}")
e("s_nop 0")
bf16r(vVar, vVar)
vRi = vT + 3
e(f"v_rcp_f32 v{vRi}, v{vVar}")
e("s_nop 0")
for k in range(10):
    u = U[k]
    e(f"v_sub_f32 v{u}, v{u}, v{vSum}")
    bf16r(u, u)
    e(f"v_mul_f32 v{vD}, v{u}, v{vRi}")
    e(f"v_fma_f32 v{u}, -v{vD}, v{vVar}, v{u}")
    e(f"v_fma_f32 v{u}, v{u}, v{vRi}, v{vD}")
    e(f"v_cvt_pk_bf16_f32 v{u}, v{u}, v{u}")
e("s_and_b32 s8, s3, 7")
e("s_mul_i32 s8, s8, 2560")
e(f"v_lshlrev_b32 v{vD}, 5, v{vLANE}")
e(f"v_add_u32 v{vD}, s8, v{vD}")
e(f"ds_write_b128 v{vD}, v[{vA}:{vA+3}] offset:{L_XN}")
e(f"ds_write_b128 v{vD}, v[{vA+4}:{vA+7}] offset:{L_XN+16}")
e(f"v_lshlrev_b32 v{vD}, 3, v{vLANE}")
e(f"v_add_u32 v{vD}, s8, v{vD}")
e(f"v_mov_b32 v{vT+6}, v{vT+9}")
e(f"v_mov_b32 v{vT+7}, v{vT+10}")
e(f"ds_write_b64 v{vD}, v[{vT+6}:{vT+7}] offset:{L_XN+2048}")
e("s_waitcnt lgkmcnt(0)")
e("s_barrier")

e("s_mul_i32 s8, s4, 640")
e("s_mul_i32 s9, s3, 40")
e("s_add_u32 s8, s8, s9")
e(f"v_lshl_add_u32 v{vT}, v{vN}, 2, v{vG}")
e(f"v_add_u32 v{vT}, s8, v{vT}")
e(f"v_lshlrev_b32 v{vT}, 2, v{vT}")
e(f"ds_read_b32 v{vT+1}, v{vT} offset:{L_XN}")
for r in range(4):
    e(f"v_mov_b32 v{vO+r}, 0")
e(f"s_waitcnt vmcnt({R}) lgkmcnt(0)")
e("s_nop 1")
for i in range(10):
    a = vA + 4 * (i % 2)
    for r in range(4):
        e(f"v_and_b32_dpp v{a+r}, v{vT+1}, v{vM+r} row_newbcast:{i} row_mask:0xf bank_mask:0xf")
    e("s_nop 1")
    e(f"v_mfma_f32_16x16x32_bf16 v[{vO}:{vO+3}], v[{a}:{a+3}], v[{vW+4*i}:{vW+4*i+3}], v[{vO}:{vO+3}]")
e(f"v_lshlrev_b32 v{vT+2}, 5, v{vN}")
e(f"v_lshl_add_u32 v{vT+2}, v{vG}, 4, v{vT+2}")
e("s_lshl_b32 s8, s3, 9")
e(f"v_add_u32 v{vT+2}, s8, v{vT+2}")
e("s_nop 7")
e("s_mov_b32 exec_hi, 0")
e(f"ds_write_b128 v{vT+2}, v[{vO}:{vO+3}] offset:{L_QP}")
e("s_mov_b64 exec, -1")
e("s_waitcnt lgkmcnt(0)")
e("s_barrier")
e("s_cmp_ge_u32 s3, 2")
e("s_cbranch_scc1 L_q_skip")
e(f"v_lshlrev_b32 v{vT}, 2, v0")
for k in range(16):
    e(f"ds_read_b32 v{vRING+0 if False else vW+k}, v{vT} offset:{L_QP+k*512}")
e("s_waitcnt lgkmcnt(0)")
for k in range(1, 16):
    e(f"v_add_f32 v{vW}, v{vW}, v{vW+k}")
e(f"v_cvt_pk_bf16_f32 v{vW}, v{vW}, v{vW}")
e(f"v_lshlrev_b32 v{vT}, 1, v0")
e(f"ds_write_b16 v{vT}, v{vW} offset:{L_QB}")
e("s_waitcnt lgkmcnt(0)")
lab("L_q_skip")
e("s_barrier")
e(f"v_lshlrev_b32 v{vT}, 4, v{vN}")
e(f"ds_read_b128 v[{vQ}:{vQ+3}], v{vT} offset:{L_QB}")

e("s_cmp_ge_u32 s2, 27")
e("s_cbranch_scc1 L_ffn_skip")
e("s_lshl_b32 s8, s2, 7")
e("s_add_u32 s10, s28, s8")
e("s_addc_u32 s11, s29, 0")
srd(sW1, 10, 11, 0)
e(f"s_sub_u32 s{sW1+2}, {640*3456}, s8")
e("s_mul_i32 s8, s2, 81920")
e("s_add_u32 s10, s32, s8")
e("s_addc_u32 s11, s33, 0")
srd(sW2, 10, 11, 81920)
vR8 = vT + 3
e(f"v_lshrrev_b32 v{vR8}, 3, v{vN}")
e(f"v_lshl_add_u32 v{vR8}, v{vG}, 1, v{vR8}")
e("s_mul_i32 s8, s3, 40")
e(f"v_add_u32 v{vT}, s8, v{vR8}")
e("s_movk_i32 s9, 3456")
e(f"v_mul_lo_u32 v{vT+1}, v{vT}, s9")
e(f"v_and_b32 v{vT+4}, 7, v{vN}")
e(f"v_lshl_add_u32 v{vT+1}, v{vT+4}, 4, v{vT+1}")
for t in range(5):
    e(f"s_mov_b32 s6, {t*8*3456}")
    e(f"buffer_load_dwordx4 v[{vW+4*t}:{vW+4*t+3}], v{vT+1}, s[{sW1}:{sW1+3}], s6 offen")
FACC = [vW + 20 + 4 * k for k in range(5)] + [vACC, vACC + 4, vO]
for a in FACC:
    for r in range(4):
        e(f"v_mov_b32 v{a+r}, 0")
e(f"v_lshlrev_b32 v{vT}, 2, v{vT}")
e("s_waitcnt vmcnt(0)")
for bb in range(8):
    for t in range(5):
        e(f"ds_read_b32 v{vT+5+(t%2)}, v{vT} offset:{L_XN + bb*2560 + t*32}")
        e("s_waitcnt lgkmcnt(0)")
        a = vA + 4 * (t % 2)
        for r in range(4):
            e(f"v_and_b32 v{a+r}, v{vT+5+(t%2)}, v{vM8+r}")
        e("s_nop 1")
        e(f"v_mfma_f32_16x16x32_bf16 v[{FACC[bb]}:{FACC[bb]+3}], v[{a}:{a+3}], v[{vW+4*t}:{vW+4*t+3}], v[{FACC[bb]}:{FACC[bb]+3}]")
e(f"v_lshrrev_b32 v{vT}, 1, v{vG}")
e("s_lshl_b32 s8, s3, 1")
e(f"v_add_u32 v{vT}, s8, v{vT}")
e(f"v_lshlrev_b32 v{vT}, 11, v{vT}")
e(f"v_lshl_add_u32 v{vT}, v{vT+4}, 5, v{vT}")
e(f"v_and_b32 v{vT+1}, 1, v{vG}")
e(f"v_lshl_add_u32 v{vT}, v{vT+1}, 4, v{vT}")
e("s_nop 7")
e("s_mov_b32 exec_lo, 0x00ff00ff")
e("s_mov_b32 exec_hi, 0xff00ff00")
for bb in range(8):
    e(f"ds_write_b128 v{vT}, v[{FACC[bb]}:{FACC[bb]+3}] offset:{L_BIG + bb*256}")
e("s_mov_b64 exec, -1")
e("s_waitcnt lgkmcnt(0)")
e("s_barrier")
e("s_and_b32 s8, s3, 3")
e("s_lshl_b32 s8, s8, 4")
e(f"v_add_u32 v{vT+7}, s8, v{vG}")
e("s_movk_i32 s9, 1280")
e(f"v_mul_lo_u32 v{vT+8}, v{vT+7}, s9")
e(f"v_lshl_add_u32 v{vT+8}, v{vN}, 4, v{vT+8}")
def w2_issue(i):
    base = vW + 20 * (i % 2)
    for blk in range(5):
        e(f"s_mov_b32 s6, {i*4*1280 + blk*256}")
        e(f"buffer_load_dwordx4 v[{base+4*blk}:{base+4*blk+3}], v{vT+8}, s[{sW2}:{sW2+3}], s6 offen")
w2_issue(0)
w2_issue(1)
e("s_cmp_ge_u32 s3, 8")
e("s_cbranch_scc1 L_h_skip")
e("s_lshl_b32 s8, s3, 8")
e(f"v_lshlrev_b32 v{vT}, 2, v{vLANE}")
e(f"v_add_u32 v{vT}, s8, v{vT}")
e("s_lshl_b32 s8, s2, 7")
e(f"v_lshlrev_b32 v{vT+1}, 1, v{vLANE}")
e(f"v_add_u32 v{vT+1}, s8, v{vT+1}")
e(f"global_load_ushort v{vT+2}, v{vT+1}, s[30:31]")
e(f"v_add_u32 v{vT+6}, {L_BIG}, v{vT}")
for half in range(4):
    for k in range(8):
        e(f"ds_read_b32 v{vA+k}, v{vT+6} offset:{(half*8+k)*2048}")
    e("s_waitcnt lgkmcnt(0)")
    if half == 0:
        e(f"v_mov_b32 v{vT+3}, v{vA}")
    for k in range(1 if half == 0 else 0, 8):
        e(f"v_add_f32 v{vT+3}, v{vT+3}, v{vA+k}")
bf16r(vT + 3, vT + 3)
e("s_waitcnt vmcnt(0)")
e(f"v_lshlrev_b32 v{vT+2}, 16, v{vT+2}")
e(f"v_add_f32 v{vT+3}, v{vT+3}, v{vT+2}")
bf16r(vT + 3, vT + 3)
e(f"v_mul_f32 v{vT+4}, v{vT+3}, v{vT+3}")
e(f"v_mul_f32 v{vT+4}, v{vT+4}, v{vT+3}")
e(f"v_mov_b32 v{vT+5}, {f32(0.044715)}")
e(f"v_fma_f32 v{vT+4}, v{vT+4}, v{vT+5}, v{vT+3}")
e(f"v_mul_f32 v{vT+4}, {f32(-2.0*0.7978845608028654*1.4426950408889634)}, v{vT+4}")
e(f"v_exp_f32 v{vT+4}, v{vT+4}")
e("s_nop 0")
e(f"v_add_f32 v{vT+4}, 1.0, v{vT+4}")
e(f"v_rcp_f32 v{vT+4}, v{vT+4}")
e("s_nop 0")
e(f"v_mul_f32 v{vT+3}, v{vT+3}, v{vT+4}")
e(f"v_cvt_pk_bf16_f32 v{vT+3}, v{vT+3}, v{vT+3}")
e(f"ds_write_b32 v{vT}, v{vT+3} offset:{L_H}")
e("s_waitcnt lgkmcnt(0)")
lab("L_h_skip")
e("s_barrier")
ZACC = [vACC, vACC + 4, vO, vA + 4, vT + 0]
e("s_lshr_b32 s8, s3, 2")
e("s_lshl_b32 s8, s8, 7")
e(f"v_lshrrev_b32 v{vT+9}, 3, v{vN}")
e(f"v_lshlrev_b32 v{vT+9}, 6, v{vT+9}")
e(f"v_add_u32 v{vT+9}, s8, v{vT+9}")
e(f"v_add_u32 v{vT+9}, v{vT+9}, v{vT+7}")
e(f"v_lshlrev_b32 v{vT+9}, 2, v{vT+9}")
for i in range(4):
    e(f"ds_read_b32 v{vQ if False else vS+i}, v{vT+9} offset:{L_H + i*16}")
for a in ZACC:
    for r in range(4):
        e(f"v_mov_b32 v{a+r}, 0")
e("s_waitcnt lgkmcnt(0)")
for i in range(4):
    base = vW + 20 * (i % 2)
    for r in range(4):
        e(f"v_and_b32 v{vA+r}, v{vS+i}, v{vM8+r}")
    e(f"s_waitcnt vmcnt({5 if i < 3 else 0})")
    e("s_nop 0")
    for blk in range(5):
        e(f"v_mfma_f32_16x16x32_bf16 v[{ZACC[blk]}:{ZACC[blk]+3}], v[{vA}:{vA+3}], v[{base+4*blk}:{base+4*blk+3}], v[{ZACC[blk]}:{ZACC[blk]+3}]")
    if i + 2 < 4:
        w2_issue(i + 2)
e("s_lshr_b32 s8, s3, 2")
e("s_lshl_b32 s8, s8, 1")
e(f"v_lshrrev_b32 v{vT+9}, 1, v{vG}")
e(f"v_add_u32 v{vT+9}, s8, v{vT+9}")
e("s_movk_i32 s9, 2560")
e(f"v_mul_lo_u32 v{vT+9}, v{vT+9}, s9")
e("s_and_b32 s8, s3, 3")
e("s_mul_i32 s8, s8, 20480")
e(f"v_add_u32 v{vT+9}, s8, v{vT+9}")
e(f"v_lshl_add_u32 v{vT+9}, v{vN}, 5, v{vT+9}")
e(f"v_and_b32 v{vT+10}, 1, v{vG}")
e(f"v_lshl_add_u32 v{vT+9}, v{vT+10}, 4, v{vT+9}")
e("s_nop 7")
for blk in range(5):
    e(f"ds_write_b128 v{vT+9}, v[{ZACC[blk]}:{ZACC[blk]+3}] offset:{L_BIG + blk*512}")
e("s_waitcnt lgkmcnt(0)")
e("s_barrier")
for pas in range(2):
    if pas == 1:
        e("s_cmp_ge_u32 s3, 4")
        e("s_cbranch_scc1 L_z_skip")
    e(f"v_add_u32 v{vT}, {pas*1024}, v0")
    e(f"v_lshlrev_b32 v{vT+1}, 4, v{vT}")
    e(f"v_add_u32 v{vT+2}, {L_BIG}, v{vT+1}")
    for k in range(4):
        e(f"ds_read_b128 v[{vW+4*k}:{vW+4*k+3}], v{vT+2} offset:{k*20480}")
    e(f"v_mul_u32_u24 v{vT}, 52429, v{vT}")
    e(f"v_lshrrev_b32 v{vT}, 23, v{vT}")
    e(f"s_mov_b32 s9, {WS_BATCH-2560}")
    e(f"v_mul_lo_u32 v{vT}, v{vT}, s9")
    e(f"v_add_u32 v{vT}, v{vT}, v{vT+1}")
    e("s_add_u32 s8, s2, 32")
    e("s_mul_i32 s8, s8, 2560")
    e(f"v_add_u32 v{vT}, s8, v{vT}")
    e("s_waitcnt lgkmcnt(0)")
    for k in range(1, 4):
        for r in range(4):
            e(f"v_add_f32 v{vW+r}, v{vW+r}, v{vW+4*k+r}")
    e(f"global_store_dwordx4 v{vT}, v[{vW}:{vW+3}], s[40:41] sc1")
    e("s_nop 1")
lab("L_z_skip")
e("s_waitcnt vmcnt(0)")
e("s_barrier")
e("s_cmp_lg_u32 s3, 0")
e("s_cbranch_scc1 L_ffn_sig_done")
e("s_mov_b64 exec, 0xff")
e(f"v_lshlrev_b32 v{vT}, 2, v{vLANE}")
e(f"v_mov_b32 v{vT+1}, 1")
e(f"global_atomic_add v{vT+2}, v{vT}, v{vT+1}, s[38:39] sc0")
e("s_waitcnt vmcnt(0)")
e(f"v_cmp_eq_u32 vcc, 58, v{vT+2}")
e("s_mov_b64 exec, -1")
e("s_nop 3")
e("s_and_b32 s7, vcc_lo, 0xff")
lab("L_ffn_sig_done")
lab("L_ffn_skip")

e("s_waitcnt lgkmcnt(0)")
for r in range(4):
    e(f"v_mov_b32 v{vS+r}, 0")
    e(f"v_mov_b32 v{vO+r}, 0")

def k_pair(i):
    e(f"s_waitcnt vmcnt({R-2})")
    t0, t1 = vT, vT + 1
    r0 = vRING + 4 * (i % R)
    r1 = vRING + 4 * ((i + 1) % R)
    e(f"v_mov_b32 v{t0}, 0")
    e(f"v_mov_b32 v{t1}, 0")
    for k in range(4):
        e(f"v_dot2c_f32_bf16 v{t0}, v{r0+k}, v{vQ+k}")
        e(f"v_dot2c_f32_bf16 v{t1}, v{r1+k}, v{vQ+k}")
    issue_kv(i + R)
    issue_kv(i + R + 1)
    for sh in (8, 4, 2, 1):
        e(f"v_add_f32_dpp v{t0}, v{t0}, v{t0} row_ror:{sh} row_mask:0xf bank_mask:0xf")
        e(f"v_add_f32_dpp v{t1}, v{t1}, v{t1} row_ror:{sh} row_mask:0xf bank_mask:0xf")
        e("s_nop 0")
    e(f"v_cmp_eq_u32 vcc, {i%16}, v{vN}")
    e(f"v_cmp_eq_u32 s[8:9], {(i+1)%16}, v{vN}")
    e("s_nop 0")
    e(f"v_cndmask_b32 v{vS+i//16}, v{vS+i//16}, v{t0}, vcc")
    e(f"v_cndmask_b32 v{vS+i//16}, v{vS+i//16}, v{t1}, s[8:9]")

for i in range(0, 64, 2):
    k_pair(i)

for r in range(4):
    bf16r(vS + r, vS + r)
    e(f"v_mul_f32 v{vS+r}, {SCALE}, v{vS+r}")
    bf16r(vS + r, vS + r)
    e(f"v_mul_f32 v{vS+r}, {LOG2E}, v{vS+r}")
vMx, vL = vT + 10, vT + 11
e(f"v_max_f32 v{vMx}, v{vS}, v{vS+1}")
e(f"v_max3_f32 v{vMx}, v{vMx}, v{vS+2}, v{vS+3}")
wave_allreduce("v_max_f32", vMx)
for r in range(4):
    e(f"v_sub_f32 v{vS+r}, v{vS+r}, v{vMx}")
    e(f"v_exp_f32 v{vS+r}, v{vS+r}")
e("s_nop 0")
e(f"v_add_f32 v{vL}, v{vS}, v{vS+1}")
e(f"v_add_f32 v{vL}, v{vL}, v{vS+2}")
e(f"v_add_f32 v{vL}, v{vL}, v{vS+3}")
wave_allreduce("v_add_f32", vL)
for r in range(4):
    e(f"v_cvt_pk_bf16_f32 v{vS+r}, v{vS+r}, v{vS+r}")
e("s_nop 1")

vWOoff = vT + 9
e("s_lshl_b32 s8, s3, 3")
e(f"v_add_u32 v{vWOoff}, s8, v{vG}")
e("s_movk_i32 s9, 1280")
e(f"v_mul_lo_u32 v{vWOoff}, v{vWOoff}, s9")
e(f"v_lshl_add_u32 v{vWOoff}, v{vN}, 4, v{vWOoff}")
wo_issued = 0
def issue_wo(k):
    i, blk = divmod(k, 5)
    e(f"s_mov_b32 s6, {i*4*1280 + blk*256}")
    e(f"buffer_load_dwordx4 v[{vW+4*k}:{vW+4*k+3}], v{vWOoff}, s[{sWO}:{sWO+3}], s6 offen")

for i in range(0, 64, 2):
    j = 64 + i
    later = (min(127, j + R - 1) - (j + 1)) + wo_issued
    e(f"s_waitcnt vmcnt({later})")
    for u in range(2):
        ii = i + u
        a = vA + 4 * u
        for r in range(4):
            e(f"v_and_b32_dpp v{a+r}, v{vS+ii//16}, v{vM+r} row_newbcast:{ii%16} row_mask:0xf bank_mask:0xf")
    for u in range(2):
        a = vA + 4 * u
        r0 = vRING + 4 * ((j + u) % R)
        e(f"v_mfma_f32_16x16x32_bf16 v[{vO}:{vO+3}], v[{a}:{a+3}], v[{r0}:{r0+3}], v[{vO}:{vO+3}]")
    if j + R < 128:
        issue_kv(j + R)
        issue_kv(j + R + 1)
    else:
        for _ in range(3):
            if wo_issued < 10:
                issue_wo(wo_issued)
                wo_issued += 1
while wo_issued < 10:
    issue_wo(wo_issued)
    wo_issued += 1

e(f"v_lshlrev_b32 v{vT+2}, 5, v{vN}")
e(f"v_lshl_add_u32 v{vT+2}, v{vG}, 4, v{vT+2}")
e("s_lshl_b32 s8, s3, 9")
e(f"v_add_u32 v{vT+2}, s8, v{vT+2}")
e("s_lshl_b32 s8, s3, 3")
e(f"v_mov_b32 v{vT+3}, s8")
e("s_nop 7")
e("s_mov_b32 exec_hi, 0")
e(f"ds_write_b128 v{vT+2}, v[{vO}:{vO+3}] offset:{L_QP}")
e("s_mov_b64 exec, 1")
e(f"ds_write_b64 v{vT+3}, v[{vMx}:{vL}] offset:{L_ML}")
e("s_mov_b64 exec, -1")
e("s_waitcnt lgkmcnt(0)")
e("s_barrier")
e("s_cmp_ge_u32 s3, 2")
e("s_cbranch_scc1 L_c_skip")
e(f"v_mov_b32 v{vT}, 0")
for k in range(8):
    e(f"ds_read_b128 v[{vRING+4*k}:{vRING+4*k+3}], v{vT} offset:{L_ML+16*k}")
e(f"v_lshlrev_b32 v{vT}, 2, v0")
e("s_waitcnt lgkmcnt(0)")
e(f"v_max_f32 v{vT+1}, v{vRING}, v{vRING+2}")
for k in range(2, 16, 2):
    e(f"v_max3_f32 v{vT+1}, v{vT+1}, v{vRING+2*k}, v{vRING+2*k+2}")
e(f"v_mov_b32 v{vT+2}, 0")
e(f"v_mov_b32 v{vT+3}, 0")
for half in range(2):
    for k in range(8):
        e(f"ds_read_b32 v{vA+k}, v{vT} offset:{L_QP+(half*8+k)*512}")
    for k in range(8):
        w = half * 8 + k
        e(f"v_sub_f32 v{vRING+2*w}, v{vRING+2*w}, v{vT+1}")
        e(f"v_exp_f32 v{vRING+2*w}, v{vRING+2*w}")
    e("s_waitcnt lgkmcnt(0)")
    for k in range(8):
        w = half * 8 + k
        e(f"v_fmac_f32 v{vT+2}, v{vRING+2*w}, v{vRING+2*w+1}")
        e(f"v_fmac_f32 v{vT+3}, v{vRING+2*w}, v{vA+k}")
e(f"v_rcp_f32 v{vT+4}, v{vT+2}")
e("s_nop 0")
e(f"v_mul_f32 v{vT+5}, v{vT+3}, v{vT+4}")
e(f"v_fma_f32 v{vT+3}, -v{vT+5}, v{vT+2}, v{vT+3}")
e(f"v_fma_f32 v{vT+3}, v{vT+3}, v{vT+4}, v{vT+5}")
e(f"v_cvt_pk_bf16_f32 v{vT+3}, v{vT+3}, v{vT+3}")
e(f"ds_write_b32 v{vT}, v{vT+3} offset:{L_OB}")
e("s_waitcnt lgkmcnt(0)")
lab("L_c_skip")
e("s_barrier")

e("s_lshl_b32 s8, s3, 3")
e(f"v_add_u32 v{vT}, s8, v{vG}")
e(f"v_lshlrev_b32 v{vT}, 2, v{vT}")
e(f"ds_read_b32 v{vT+1}, v{vT} offset:{L_OB}")
e(f"ds_read_b32 v{vT+2}, v{vT} offset:{L_OB+16}")
for k in range(20):
    e(f"v_mov_b32 v{vPACC+k}, 0")
e("s_waitcnt lgkmcnt(0)")
for i in range(2):
    a = vA + 4 * i
    for r in range(4):
        e(f"v_and_b32 v{a+r}, v{vT+1+i}, v{vM+r}")
e("s_waitcnt vmcnt(0)")
e("s_nop 0")
for i in range(2):
    a = vA + 4 * i
    for blk in range(5):
        k = i * 5 + blk
        e(f"v_mfma_f32_16x16x32_bf16 v[{vPACC+4*blk}:{vPACC+4*blk+3}], v[{a}:{a+3}], v[{vW+4*k}:{vW+4*k+3}], v[{vPACC+4*blk}:{vPACC+4*blk+3}]")
e(f"v_lshlrev_b32 v{vT+2}, 5, v{vN}")
e(f"v_lshl_add_u32 v{vT+2}, v{vG}, 4, v{vT+2}")
e("s_mul_i32 s8, s3, 2560")
e(f"v_add_u32 v{vT+2}, s8, v{vT+2}")
e("s_nop 7")
e("s_mov_b32 exec_hi, 0")
for blk in range(5):
    e(f"ds_write_b128 v{vT+2}, v[{vPACC+4*blk}:{vPACC+4*blk+3}] offset:{L_BIG+blk*512}")
e("s_mov_b64 exec, -1")
e("s_waitcnt lgkmcnt(0)")
e("s_barrier")
e("s_cmp_ge_u32 s3, 3")
e("s_cbranch_scc1 L_s_skip")
e("v_cmp_gt_u32 vcc, 160, v0")
e("s_and_saveexec_b64 s[12:13], vcc")
e("s_cbranch_execz L_s_skip2")
e(f"v_lshlrev_b32 v{vT}, 4, v0")
e(f"v_add_u32 v{vT+1}, {L_BIG}, v{vT}")
for k in range(16):
    e(f"ds_read_b128 v[{vRING+4*k}:{vRING+4*k+3}], v{vT+1} offset:{k*2560}")
e(f"s_mul_i32 s8, s4, {WS_BATCH}")
e("s_mul_i32 s9, s5, 2560")
e("s_add_u32 s8, s8, s9")
e(f"v_add_u32 v{vT}, s8, v{vT}")
e("s_waitcnt lgkmcnt(0)")
for k in range(1, 16):
    for r in range(4):
        e(f"v_add_f32 v{vRING+r}, v{vRING+r}, v{vRING+4*k+r}")
e(f"global_store_dwordx4 v{vT}, v[{vRING}:{vRING+3}], s[40:41] sc1")
e("s_waitcnt vmcnt(0)")
lab("L_s_skip2")
e("s_mov_b64 exec, s[12:13]")
lab("L_s_skip")
e("s_barrier")
e("s_cmp_lg_u32 s3, 0")
e("s_cbranch_scc1 L_sig_done")
e("s_mov_b64 exec, 1")
e("s_lshl_b32 s8, s4, 2")
e(f"v_mov_b32 v{vT}, s8")
e(f"v_mov_b32 v{vT+1}, 1")
e(f"global_atomic_add v{vT+2}, v{vT}, v{vT+1}, s[38:39] sc0")
e("s_waitcnt vmcnt(0)")
e(f"v_readfirstlane_b32 s8, v{vT+2}")
e("s_lshl_b32 s9, 1, s4")
e("s_cmp_eq_u32 s8, 58")
e("s_cselect_b32 s9, s9, 0")
e("s_or_b32 s7, s7, s9")
e(f"v_mov_b32 v{vT}, 0")
e(f"v_mov_b32 v{vT+1}, s7")
e(f"ds_write_b32 v{vT}, v{vT+1} offset:{L_FLAG}")
e("s_waitcnt lgkmcnt(0)")
e("s_mov_b64 exec, -1")
lab("L_sig_done")
e("s_barrier")
e(f"v_mov_b32 v{vT}, 0")
e(f"ds_read_b32 v{vT+1}, v{vT} offset:{L_FLAG}")
e("s_waitcnt lgkmcnt(0)")
e(f"v_readfirstlane_b32 s7, v{vT+1}")
e("s_cmp_eq_u32 s7, 0")
e("s_cbranch_scc1 L_end")

lab("L_fin_loop")
e("s_ff1_i32_b32 s14, s7")
e("s_lshl_b32 s8, 1, s14")
e("s_xor_b32 s7, s7, s8")
e(f"s_mul_i32 s8, s14, {WS_BATCH}")
e("s_add_u32 s10, s40, s8")
e("s_addc_u32 s11, s41, 0")
srd(sWS, 10, 11, WS_BATCH)
e(f"v_mul_u32_u24 v{vT}, 52429, v0")
e(f"v_lshrrev_b32 v{vT}, 23, v{vT}")
e(f"v_mul_u32_u24 v{vT+1}, 160, v{vT}")
e(f"v_sub_u32 v{vT+1}, v0, v{vT+1}")
e(f"v_lshlrev_b32 v{vT+1}, 4, v{vT+1}")
e("s_movk_i32 s9, 2560")
e(f"v_mul_lo_u32 v{vT+2}, v{vT}, s9")
e(f"v_add_u32 v{vT+2}, v{vT+2}, v{vT+1}")
e("v_cmp_gt_u32 vcc, 960, v0")
e("s_and_saveexec_b64 s[12:13], vcc")
e("s_cbranch_execz L_fin_a")
for j in range(10):
    e(f"s_mov_b32 s6, {j*6*2560}")
    e(f"buffer_load_dwordx4 v[{vRING+4*j}:{vRING+4*j+3}], v{vT+2}, s[{sWS}:{sWS+3}], s6 offen sc1")
e(f"v_cmp_gt_u32 vcc, 2, v{vT}")
e("s_waitcnt vmcnt(0)")
S4, Z4 = vRING, vRING + 24
for j in range(1, 5):
    for r in range(4):
        e(f"v_add_f32 v{S4+r}, v{S4+r}, v{vRING+4*j+r}")
for j in range(7, 10):
    for r in range(4):
        e(f"v_add_f32 v{Z4+r}, v{Z4+r}, v{vRING+4*j+r}")
for r in range(4):
    e(f"v_cndmask_b32 v{vT+4}, 0, v{vRING+20+r}, vcc")
    e(f"v_cndmask_b32 v{vT+5}, v{vRING+20+r}, 0, vcc")
    e(f"v_add_f32 v{S4+r}, v{S4+r}, v{vT+4}")
    e(f"v_add_f32 v{Z4+r}, v{Z4+r}, v{vT+5}")
e("s_movk_i32 s9, 5120")
e(f"v_mul_lo_u32 v{vT+2}, v{vT}, s9")
e(f"v_add_u32 v{vT+2}, v{vT+2}, v{vT+1}")
e(f"ds_write_b128 v{vT+2}, v[{S4}:{S4+3}] offset:{L_BIG}")
e(f"ds_write_b128 v{vT+2}, v[{Z4}:{Z4+3}] offset:{L_BIG+2560}")
e("s_waitcnt lgkmcnt(0)")
lab("L_fin_a")
e("s_mov_b64 exec, s[12:13]")
e("s_barrier")
e("v_cmp_gt_u32 vcc, 640, v0")
e("s_and_saveexec_b64 s[12:13], vcc")
e("s_cbranch_execz L_fin_b")
e(f"v_lshlrev_b32 v{vT}, 2, v0")
for k in range(6):
    e(f"ds_read_b32 v{vRING+k}, v{vT} offset:{L_BIG+k*5120}")
    e(f"ds_read_b32 v{vRING+8+k}, v{vT} offset:{L_BIG+k*5120+2560}")
e(f"v_lshlrev_b32 v{vT+1}, 1, v0")
e(f"global_load_ushort v{vT+2}, v{vT+1}, s[34:35]")
e("s_mul_i32 s8, s14, 1280")
e(f"v_add_u32 v{vT+1}, s8, v{vT+1}")
e(f"global_load_ushort v{vT+3}, v{vT+1}, s[16:17]")
e("s_waitcnt lgkmcnt(0)")
for k in range(1, 6):
    e(f"v_add_f32 v{vRING}, v{vRING}, v{vRING+k}")
    e(f"v_add_f32 v{vRING+8}, v{vRING+8}, v{vRING+8+k}")
bf16r(vRING, vRING)
bf16r(vRING + 8, vRING + 8)
e("s_waitcnt vmcnt(0)")
e(f"v_lshlrev_b32 v{vT+2}, 16, v{vT+2}")
e(f"v_lshlrev_b32 v{vT+3}, 16, v{vT+3}")
e(f"v_add_f32 v{vRING+8}, v{vRING+8}, v{vT+2}")
bf16r(vRING + 8, vRING + 8)
e(f"v_mul_f32 v{vT+4}, {f32(-1.4426950408889634)}, v{vRING+8}")
e(f"v_exp_f32 v{vT+4}, v{vT+4}")
e("s_nop 0")
e(f"v_add_f32 v{vT+4}, 1.0, v{vT+4}")
e(f"v_rcp_f32 v{vT+4}, v{vT+4}")
e("s_nop 0")
e(f"v_mul_f32 v{vRING+8}, v{vRING+8}, v{vT+4}")
bf16r(vRING + 8, vRING + 8)
e(f"v_mul_f32 v{vRING}, v{vRING}, v{vRING+8}")
bf16r(vRING, vRING)
e(f"v_add_f32 v{vRING}, v{vRING}, v{vT+3}")
e(f"v_cvt_pk_bf16_f32 v{vRING}, v{vRING}, v{vRING}")
e(f"global_store_short v{vT+1}, v{vRING}, s[36:37]")
e("s_waitcnt vmcnt(0)")
lab("L_fin_b")
e("s_mov_b64 exec, s[12:13]")
e("s_barrier")
e("s_cmp_lg_u32 s7, 0")
e("s_cbranch_scc1 L_fin_loop")
lab("L_end")
e("s_endpgm")

out += "\n".join(lines) + "\n"
out += f""".section .rodata,"a"
.p2align 6
.amdhsa_kernel {NAME}_kernel
  .amdhsa_next_free_vgpr 128
  .amdhsa_next_free_sgpr 96
  .amdhsa_accum_offset 128
  .amdhsa_group_segment_fixed_size 0
  .amdhsa_kernarg_size 104
  .amdhsa_user_sgpr_count 2
  .amdhsa_user_sgpr_kernarg_segment_ptr 1
  .amdhsa_system_sgpr_workgroup_id_x 1
.end_amdhsa_kernel
"""
open(sys.argv[1], "w").write(out)
```

```python
import sys, struct

NAME = "recurrent_scan__mha_block_cached__dense_activation_gelu__decode"

def f32(x):
    return "0x%08x" % struct.unpack("<I", struct.pack("<f", x))[0]

LOG2E = f32(1.4426950408889634)
SCALE = f32(128 ** -0.5)
INV640 = f32(1.0 / 640)
EPS = f32(1e-5)

OPT = dict(ring=8, nt=1, interleave=0, stamps=0, map=0, nw=16, nowq=0, nowo=0, noffn=0, ntw=1, sc1w=0, ffnst=0, fpar=0)
for a in sys.argv[2:]:
    k, v = a.split("=")
    OPT[k] = int(v)
R = OPT["ring"]
NT = " nt" if OPT["nt"] else ""
NTW = (" nt" if OPT["ntw"] else "") + (" sc1" if OPT["sc1w"] else "")

L_XN = 0
L_QP = 20480
L_QB = 28672
L_ML = 28928
L_FLAG = 29056
L_OB = 29184
L_H = 30720
L_BIG = 32768
L_HP = 32768 + 81920
L_S = 32768 + 81920 + 32768
L_CNT = 29060
L_FSYNC = 29064
LDS_BYTES = 163840

WS_BATCH = 59 * 2560

lines = []
def e(s):
    lines.append("    " + s)
def lab(s):
    lines.append(s + ":")
def c(s):
    lines.append("    ; " + s)

sK, sV, sX, sWQ, sWO, sW1, sW2, sWS = 44, 48, 52, 56, 60, 64, 68, 72

def srd(s, lo, hi, nrec):
    e(f"s_mov_b32 s{s}, s{lo}")
    e(f"s_and_b32 s{s+1}, s{hi}, 0xffff")
    e(f"s_mov_b32 s{s+2}, {nrec}")
    e(f"s_mov_b32 s{s+3}, 0x00020000")

vLANE, vG, vN = 1, 2, 3
vM = 4
vM8 = 8
vKV = 12
vB1 = 13
vQ = 16
vS = 20
vO = 24
vA = 28
vT = 36
vRING = 48
vW = 80
vACC = vW + 40
vPACC = vRING

def bf16r(dst, src, tmp=None):
    e(f"v_cvt_pk_bf16_f32 v{dst}, v{src}, v{src}")
    e(f"v_and_b32 v{dst}, 0xffff0000, v{dst}")

def row_allreduce(op, v, t):
    for sh in (8, 4, 2, 1):
        e("s_nop 1")
        e(f"{op}_dpp v{v}, v{v}, v{v} row_ror:{sh} row_mask:0xf bank_mask:0xf")

def wave_allreduce(op, v):
    row_allreduce(op, v, None)
    e("s_nop 1")
    e(f"v_readlane_b32 s8, v{v}, 0")
    e(f"v_readlane_b32 s9, v{v}, 16")
    e(f"v_readlane_b32 s10, v{v}, 32")
    e(f"v_readlane_b32 s11, v{v}, 48")
    e("s_nop 1")
    e(f"v_mov_b32 v{v}, s8")
    e(f"{op} v{v}, s9, v{v}")
    e(f"{op} v{v}, s10, v{v}")
    e(f"{op} v{v}, s11, v{v}")

def stamp(j):
    if OPT["stamps"]:
        e(f"s_memrealtime s[{86+2*j}:{87+2*j}]")
        e("s_waitcnt lgkmcnt(0)")

hdr = open("cdna_kernels/%s.s.ref" % NAME).read().split("; Override launch")[0]
out = hdr
out += f"; @launch grid=(256,1,1) block=(1024,1,1) lds={LDS_BYTES}\n"
out += f""".amdgcn_target "amdgcn-amd-amdhsa--gfx950"
.text
.globl {NAME}_kernel
.p2align 8
.type {NAME}_kernel,@function
{NAME}_kernel:
"""

e("s_cmp_ge_u32 s2, 256")
e("s_cbranch_scc1 L_end")
stamp(0)
e("s_load_dwordx16 s[16:31], s[0:1], 0")
e("s_load_dwordx8 s[32:39], s[0:1], 64")
e("s_load_dwordx2 s[40:41], s[0:1], 96")
e(f"v_and_b32 v{vLANE}, 63, v0")
e("v_lshrrev_b32 v2, 6, v0")
e("s_nop 0")
e("v_readfirstlane_b32 s3, v2")
e(f"v_lshrrev_b32 v{vG}, 4, v{vLANE}")
e(f"v_and_b32 v{vN}, 15, v{vLANE}")
if OPT["map"] == 0:
    e("s_lshr_b32 s4, s2, 5")
    e("s_and_b32 s5, s2, 31")
else:
    e("s_and_b32 s4, s2, 7")
    e("s_lshr_b32 s5, s2, 3")
e("s_lshl_b32 s15, s4, 5")
e("s_add_u32 s15, s15, s5")

e(f"v_and_b32 v{vT}, 7, v{vN}")
e(f"v_mov_b32 v{vT+1}, 0xffff")
e(f"v_mov_b32 v{vT+2}, 0xffff0000")
for r in range(4):
    for (dst, src) in ((vM + r, vN), (vM8 + r, vT)):
        e(f"v_mov_b32 v{dst}, 0")
        e(f"v_cmp_eq_u32 vcc, {2*r}, v{src}")
        e("s_nop 1")
        e(f"v_cndmask_b32 v{dst}, v{dst}, v{vT+1}, vcc")
        e(f"v_cmp_eq_u32 vcc, {2*r+1}, v{src}")
        e("s_nop 1")
        e(f"v_cndmask_b32 v{dst}, v{dst}, v{vT+2}, vcc")
e("s_waitcnt lgkmcnt(0)")
e("s_lshl_b32 s8, s15, 20")
e("s_add_u32 s10, s18, s8")
e("s_addc_u32 s11, s19, 0")
srd(sK, 10, 11, 1 << 20)
e("s_add_u32 s10, s20, s8")
e("s_addc_u32 s11, s21, 0")
srd(sV, 10, 11, 1 << 20)
srd(sX, 16, 17, 10240)
e("s_lshl_b32 s8, s5, 8")
e("s_add_u32 s10, s22, s8")
e("s_addc_u32 s11, s23, 0")
srd(sWQ, 10, 11, 0)
e(f"s_sub_u32 s{sWQ+2}, {640*8192}, s8")
if OPT["nowq"]: e(f"s_mov_b32 s{sWQ+2}, 0")
e("s_mul_i32 s8, s5, 163840")
e("s_add_u32 s10, s24, s8")
e("s_addc_u32 s11, s25, 0")
srd(sWO, 10, 11, 0 if OPT["nowo"] else 163840)

vX = vT + 4
e("s_and_b32 s8, s3, 7")
e("s_mul_i32 s8, s8, 1280")
e(f"v_lshlrev_b32 v{vT}, 4, v{vLANE}")
e(f"v_lshlrev_b32 v{vT+1}, 2, v{vLANE}")
e(f"buffer_load_dwordx4 v[{vX}:{vX+3}], v{vT}, s[{sX}:{sX+3}], s8 offen")
e(f"buffer_load_dword v{vX+4}, v{vT+1}, s[{sX}:{sX+3}], s8 offen offset:1024")
e("s_mul_i32 s8, s3, 40")
e(f"v_add_u32 v{vT+2}, s8, v{vG}")
e(f"v_lshlrev_b32 v{vT+2}, 13, v{vT+2}")
e(f"v_lshl_add_u32 v{vT+2}, v{vN}, 4, v{vT+2}")
for i in range(10):
    e(f"s_mov_b32 s6, {i*32768}")
    e(f"buffer_load_dwordx4 v[{vW+4*i}:{vW+4*i+3}], v{vT+2}, s[{sWQ}:{sWQ+3}], s6 offen{NTW}")
e(f"v_lshlrev_b32 v{vKV}, 4, v{vLANE}")
sA = (42, 43)
sCUR = 76
e("s_lshr_b32 s7, s2, 1")
e("s_and_b32 s8, s2, 1")
e(f"s_cmp_eq_u32 s8, {OPT['fpar']}")
e("s_cselect_b32 s7, s7, 255")
e("s_cmp_lt_u32 s7, 27")
e("s_cselect_b32 s13, 12, 16")
e(f"s_add_u32 s{sA[1]}, s3, s13")
e("s_cmp_lt_u32 s3, s13")
e(f"s_cselect_b32 s{sA[0]}, s3, 1024")
e(f"s_cselect_b32 s{sA[1]}, s{sA[1]}, 1024")
e(f"s_mov_b32 s{sCUR+2}, {1<<20}")
e(f"s_mov_b32 s{sCUR+3}, 0x00020000")

def issue_group(st, sid):
    e(f"s_cmp_lt_u32 s{sid}, 256")
    e(f"s_cselect_b64 s[{sCUR}:{sCUR+1}], s[{sK}:{sK+1}], s[{sV}:{sV+1}]")
    e(f"s_and_b32 s6, s{sid}, 255")
    e("s_lshl_b32 s6, s6, 12")
    e(f"s_cmp_lt_u32 s{sid}, 512")
    e(f"s_cselect_b32 s6, s6, {1<<20}")
    for i in range(4):
        r = vRING + 16 * st + 4 * i
        e(f"buffer_load_dwordx4 v[{r}:{r+3}], v{vKV}, s[{sCUR}:{sCUR+3}], s6 offen offset:{1024*i}{NT}")

issue_group(0, sA[0])
issue_group(1, sA[1])
e(f"v_mov_b32 v{vT+2}, 0")
e("s_lshl_b32 s8, s13, 1")
e(f"v_mov_b32 v{vT+3}, s8")
e(f"ds_write_b32 v{vT+2}, v{vT+3} offset:{L_CNT}")
e(f"ds_write_b32 v{vT+2}, v{vT+2} offset:{L_FLAG}")
e(f"ds_write_b32 v{vT+2}, v{vT+2} offset:{L_FSYNC}")

e(f"s_waitcnt vmcnt({10+R})")
U = [vA + k for k in range(8)] + [vT + 9, vT + 10]
for k in range(5):
    e(f"v_lshlrev_b32 v{U[2*k]}, 16, v{vX+k}")
    e(f"v_and_b32 v{U[2*k+1]}, 0xffff0000, v{vX+k}")
vSum = vT
e(f"v_add_f32 v{vSum}, v{U[0]}, v{U[1]}")
for k in range(2, 10):
    e(f"v_add_f32 v{vSum}, v{vSum}, v{U[k]}")
wave_allreduce("v_add_f32", vSum)
e(f"v_mul_f32 v{vSum}, {INV640}, v{vSum}")
vVar = vT + 1
vD = vT + 2
e(f"v_sub_f32 v{vD}, v{U[0]}, v{vSum}")
e(f"v_mul_f32 v{vVar}, v{vD}, v{vD}")
for k in range(1, 10):
    e(f"v_sub_f32 v{vD}, v{U[k]}, v{vSum}")
    e(f"v_fmac_f32 v{vVar}, v{vD}, v{vD}")
wave_allreduce("v_add_f32", vVar)
e(f"v_mul_f32 v{vVar}, {INV640}, v{vVar}")
bf16r(vSum, vSum)
bf16r(vVar, vVar)
e(f"v_add_f32 v{vVar}, {EPS}, v{vVar}")
bf16r(vVar, vVar)
e(f"v_sqrt_f32 v{vVar}, v{vVar}")
e("s_nop 0")
bf16r(vVar, vVar)
vRi = vT + 3
e(f"v_rcp_f32 v{vRi}, v{vVar}")
e("s_nop 0")
for k in range(10):
    u = U[k]
    e(f"v_sub_f32 v{u}, v{u}, v{vSum}")
    bf16r(u, u)
    e(f"v_mul_f32 v{vD}, v{u}, v{vRi}")
    e(f"v_fma_f32 v{u}, -v{vD}, v{vVar}, v{u}")
    e(f"v_fma_f32 v{u}, v{u}, v{vRi}, v{vD}")
    e(f"v_cvt_pk_bf16_f32 v{u}, v{u}, v{u}")
e("s_and_b32 s8, s3, 7")
e("s_mul_i32 s8, s8, 2560")
e(f"v_lshlrev_b32 v{vD}, 5, v{vLANE}")
e(f"v_add_u32 v{vD}, s8, v{vD}")
e(f"ds_write_b128 v{vD}, v[{vA}:{vA+3}] offset:{L_XN}")
e(f"ds_write_b128 v{vD}, v[{vA+4}:{vA+7}] offset:{L_XN+16}")
e(f"v_lshlrev_b32 v{vD}, 3, v{vLANE}")
e(f"v_add_u32 v{vD}, s8, v{vD}")
e(f"v_mov_b32 v{vT+6}, v{vT+9}")
e(f"v_mov_b32 v{vT+7}, v{vT+10}")
e(f"ds_write_b64 v{vD}, v[{vT+6}:{vT+7}] offset:{L_XN+2048}")
e("s_waitcnt lgkmcnt(0)")
e("s_barrier")

e("s_mul_i32 s8, s4, 640")
e("s_mul_i32 s9, s3, 40")
e("s_add_u32 s8, s8, s9")
e(f"v_lshl_add_u32 v{vT}, v{vN}, 2, v{vG}")
e(f"v_add_u32 v{vT}, s8, v{vT}")
e(f"v_lshlrev_b32 v{vT}, 2, v{vT}")
e(f"ds_read_b32 v{vT+1}, v{vT} offset:{L_XN}")
for r in range(4):
    e(f"v_mov_b32 v{vO+r}, 0")
e(f"s_waitcnt vmcnt({R}) lgkmcnt(0)")
e("s_nop 1")
for i in range(10):
    a = vA + 4 * (i % 2)
    for r in range(4):
        e(f"v_and_b32_dpp v{a+r}, v{vT+1}, v{vM+r} row_newbcast:{i} row_mask:0xf bank_mask:0xf")
    e("s_nop 1")
    e(f"v_mfma_f32_16x16x32_bf16 v[{vO}:{vO+3}], v[{a}:{a+3}], v[{vW+4*i}:{vW+4*i+3}], v[{vO}:{vO+3}]")
e(f"v_lshlrev_b32 v{vT+2}, 5, v{vN}")
e(f"v_lshl_add_u32 v{vT+2}, v{vG}, 4, v{vT+2}")
e("s_lshl_b32 s8, s3, 9")
e(f"v_add_u32 v{vT+2}, s8, v{vT+2}")
e("s_nop 7")
e("s_mov_b32 exec_hi, 0")
e(f"ds_write_b128 v{vT+2}, v[{vO}:{vO+3}] offset:{L_QP}")
e("s_mov_b64 exec, -1")
e("s_waitcnt lgkmcnt(0)")
e("s_barrier")
e("s_cmp_ge_u32 s3, 2")
e("s_cbranch_scc1 L_q_skip")
e(f"v_lshlrev_b32 v{vT}, 2, v0")
for k in range(16):
    e(f"ds_read_b32 v{vRING+0 if False else vW+k}, v{vT} offset:{L_QP+k*512}")
e("s_waitcnt lgkmcnt(0)")
for k in range(1, 16):
    e(f"v_add_f32 v{vW}, v{vW}, v{vW+k}")
e(f"v_cvt_pk_bf16_f32 v{vW}, v{vW}, v{vW}")
e(f"v_lshlrev_b32 v{vT}, 1, v0")
e(f"ds_write_b16 v{vT}, v{vW} offset:{L_QB}")
e("s_waitcnt lgkmcnt(0)")
lab("L_q_skip")
e("s_barrier")
e(f"v_lshlrev_b32 v{vT}, 4, v{vN}")
e(f"ds_read_b128 v[{vQ}:{vQ+3}], v{vT} offset:{L_QB}")

stamp(1)
stamp(2)
vNext, vSb, vSbV, vOne = 14, 15, vS, vS + 1
vMx, vL, vP = vT + 10, vT + 11, vS + 2
vZero = vS + 3
lab("L_kinit")
e("s_waitcnt lgkmcnt(0)")
for r in range(4):
    e(f"v_mov_b32 v{vO+r}, 0")
e(f"v_mov_b32 v{vOne}, 1")
e(f"v_mov_b32 v{vZero}, 0")
e(f"v_mov_b32 v{vMx}, 0xff800000")
e(f"v_mov_b32 v{vL}, 0")
e(f"v_lshl_add_u32 v{vSb}, v{vN}, 2, v{vG}")
e(f"v_lshlrev_b32 v{vSb}, 2, v{vSb}")
e(f"v_add_u32 v{vSb}, {L_S}, v{vSb}")
e(f"v_and_b32 v{vSbV}, 3, v{vN}")
e(f"v_lshl_add_u32 v{vSbV}, v{vSbV}, 2, v{vG}")
e(f"v_lshlrev_b32 v{vSbV}, 2, v{vSbV}")
e(f"v_add_u32 v{vSbV}, {L_S}, v{vSbV}")
e(f"v_and_b32 v{vT}, 3, v{vN}")
for k in (1, 2, 3):
    e(f"v_cmp_eq_u32 s[{78+2*k}:{79+2*k}], {k}, v{vT}")

def grab():
    e("s_mov_b64 exec, 1")
    e(f"ds_add_rtn_u32 v{vNext}, v{vZero}, v{vOne} offset:{L_CNT}")
    e("s_mov_b64 exec, -1")
e("s_cmp_ge_u32 s3, s13")
e("s_cbranch_scc1 L_ffn")
grab()
e(f"s_cmp_lt_u32 s{sA[0]}, 1024")
e("s_cbranch_scc1 L_k0")
for st in range(2):
    e("s_waitcnt lgkmcnt(0)")
    e(f"v_readfirstlane_b32 s{sA[st]}, v{vNext}")
    e("s_nop 3")
    issue_group(st, sA[st])
    grab()

def k_step(st):
    lab(f"L_k{st}")
    e(f"s_cmp_ge_u32 s{sA[st]}, 256")
    e(f"s_cbranch_scc1 L_mid{st}")
    e("s_waitcnt vmcnt(4)")
    T = [vT + i for i in range(4)]
    for i in range(4):
        e(f"v_mov_b32 v{T[i]}, 0")
    for k in range(4):
        for i in range(4):
            r = vRING + 16 * st + 4 * i
            e(f"v_dot2c_f32_bf16 v{T[i]}, v{r+k}, v{vQ+k}")
    e("s_waitcnt lgkmcnt(0)")
    e(f"v_readfirstlane_b32 s9, v{vNext}")
    e(f"s_lshl_b32 s8, s{sA[st]}, 6")
    e(f"v_add_u32 v{vT+4}, s8, v{vSb}")
    e(f"s_mov_b32 s{sA[st]}, s9")
    issue_group(st, sA[st])
    grab()
    for sh in (8, 4, 2, 1):
        for i in range(4):
            e(f"v_add_f32_dpp v{T[i]}, v{T[i]}, v{T[i]} row_ror:{sh} row_mask:0xf bank_mask:0xf")
    for k in (1, 2, 3):
        e(f"v_cndmask_b32 v{T[0]}, v{T[0]}, v{T[k]}, s[{78+2*k}:{79+2*k}]")
    bf16r(T[0], T[0])
    e(f"v_mul_f32 v{T[0]}, {SCALE}, v{T[0]}")
    bf16r(T[0], T[0])
    e(f"v_mul_f32 v{T[0]}, {LOG2E}, v{T[0]}")
    e(f"v_max_f32 v{vMx}, v{vMx}, v{T[0]}")
    e("s_mov_b32 exec_lo, 0x000f000f")
    e("s_mov_b32 exec_hi, 0x000f000f")
    e(f"ds_write_b32 v{vT+4}, v{T[0]}")
    e("s_mov_b64 exec, -1")

k_step(0)
k_step(1)
e("s_branch L_k0")
lab("L_ffn")
e("s_setprio 3")
e("s_sub_u32 s14, s3, 12")
e("s_lshl_b32 s8, s7, 7")
e("s_add_u32 s10, s28, s8")
e("s_addc_u32 s11, s29, 0")
srd(sW1, 10, 11, 0)
e(f"s_sub_u32 s{sW1+2}, {640*3456}, s8")
if OPT["noffn"]: e(f"s_mov_b32 s{sW1+2}, 0")
e("s_mul_i32 s8, s7, 81920")
e("s_add_u32 s10, s32, s8")
e("s_addc_u32 s11, s33, 0")
srd(sW2, 10, 11, 0 if OPT["noffn"] else 81920)
e(f"v_lshrrev_b32 v{vT+3}, 3, v{vN}")
e(f"v_lshl_add_u32 v{vT+3}, v{vG}, 1, v{vT+3}")
e("s_mul_i32 s8, s14, 160")
e(f"v_add_u32 v{vT}, s8, v{vT+3}")
e("s_movk_i32 s9, 3456")
e(f"v_mul_lo_u32 v{vT+1}, v{vT}, s9")
e(f"v_and_b32 v{vT+4}, 7, v{vN}")
e(f"v_lshl_add_u32 v{vT+1}, v{vT+4}, 4, v{vT+1}")
for t in range(20):
    e(f"s_mov_b32 s6, {t*8*3456}")
    e(f"buffer_load_dwordx4 v[{48+4*t}:{48+4*t+3}], v{vT+1}, s[{sW1}:{sW1+3}], s6 offen{NTW}")
e("s_lshl_b32 s8, s7, 7")
e(f"v_lshlrev_b32 v{vT+1}, 1, v{vLANE}")
e(f"v_add_u32 v{vT+1}, s8, v{vT+1}")
e(f"global_load_ushort v{vB1}, v{vT+1}, s[30:31]")
e(f"v_lshlrev_b32 v{vT+1}, 4, v{vLANE}")
e("s_mul_i32 s8, s14, 20480")
for t in range(20):
    e(f"s_add_u32 s9, s8, {t*1024}")
    e(f"s_add_u32 s10, s9, {L_BIG}")
    e("s_mov_b32 m0, s10")
    e("s_nop 0")
    e(f"buffer_load_dwordx4 v{vT+1}, s[{sW2}:{sW2+3}], s9 offen{NTW} lds")
e(f"v_lshlrev_b32 v{vT}, 2, v{vT}")
F = [16, 20, 24, vA + 4]
e("s_lshl_b32 s8, s14, 11")
e(f"s_add_u32 s8, s8, {L_HP}")
e(f"v_lshlrev_b32 v{vT+11}, 5, v{vN}")
e(f"v_add_u32 v{vT+11}, s8, v{vT+11}")
e(f"v_and_b32 v{vT+1}, 1, v{vG}")
e(f"v_lshl_add_u32 v{vT+11}, v{vT+1}, 4, v{vT+11}")
e(f"v_lshrrev_b32 v{vT+1}, 1, v{vG}")
e(f"v_lshl_add_u32 v{vT+11}, v{vT+1}, 9, v{vT+11}")
e("s_waitcnt vmcnt(21)")
for p in range(2):
    for a in F:
        for r in range(4):
            e(f"v_mov_b32 v{a+r}, 0")
    for k in range(4):
        bb = 4 * p + k
        for half in range(2):
            for t in range(10):
                e(f"ds_read_b32 v{vT+1+t}, v{vT} offset:{L_XN + bb*2560 + (half*10+t)*32}")
            for t in range(10):
                e(f"s_waitcnt lgkmcnt({9-t})")
                for r in range(4):
                    e(f"v_and_b32 v{vA+r}, v{vT+1+t}, v{vM8+r}")
                e("s_nop 1")
                w = 48 + 4 * (half * 10 + t)
                e(f"v_mfma_f32_16x16x32_bf16 v[{F[k]}:{F[k]+3}], v[{vA}:{vA+3}], v[{w}:{w+3}], v[{F[k]}:{F[k]+3}]")
    e("s_nop 7")
    for k in range(2):
        for r in range(4):
            e(f"v_permlane32_swap_b32 v{F[k]+r}, v{F[k+2]+r}")
    e("s_nop 1")
    for k in range(2):
        for r in range(4):
            e(f"v_add_f32_dpp v{F[k]+r}, v{F[k+2]+r}, v{F[k]+r} row_ror:8 row_mask:0xf bank_mask:0xf")
    e("s_mov_b32 exec_lo, 0x00ff00ff")
    e("s_mov_b32 exec_hi, 0x00ff00ff")
    for k in range(2):
        e(f"ds_write_b128 v{vT+11}, v[{F[k]}:{F[k]+3}] offset:{(4*p+k)*256}")
    e("s_mov_b64 exec, -1")
    e("s_nop 1")
e("s_waitcnt vmcnt(0) lgkmcnt(0)")
e(f"v_mov_b32 v{vT}, 0")
e(f"v_mov_b32 v{vT+1}, 1")
e("s_mov_b64 exec, 1")
e(f"ds_add_u32 v{vT}, v{vT+1} offset:{L_FSYNC}")
e("s_mov_b64 exec, -1")
lab("L_fspin")
e(f"ds_read_b32 v{vT+2}, v{vT} offset:{L_FSYNC}")
e("s_waitcnt lgkmcnt(0)")
e(f"v_readfirstlane_b32 s8, v{vT+2}")
e("s_cmp_ge_u32 s8, 4")
e("s_cbranch_scc1 L_fspin_done")
e("s_sleep 2")
e("s_branch L_fspin")
lab("L_fspin_done")
e("s_lshl_b32 s8, s14, 9")
e(f"v_lshlrev_b32 v{vT}, 2, v{vLANE}")
e(f"v_add_u32 v{vT}, s8, v{vT}")
e(f"v_add_u32 v{vT+6}, {L_HP}, v{vT}")
e(f"v_lshlrev_b32 v{vT+2}, 16, v{vB1}")
for k in range(2):
    for j in range(4):
        e(f"ds_read_b32 v{vA+j}, v{vT+6} offset:{j*2048 + k*256}")
    e("s_waitcnt lgkmcnt(0)")
    e(f"v_add_f32 v{vT+3}, v{vA}, v{vA+1}")
    e(f"v_add_f32 v{vT+3}, v{vT+3}, v{vA+2}")
    e(f"v_add_f32 v{vT+3}, v{vT+3}, v{vA+3}")
    bf16r(vT + 3, vT + 3)
    e(f"v_add_f32 v{vT+3}, v{vT+3}, v{vT+2}")
    bf16r(vT + 3, vT + 3)
    e(f"v_mul_f32 v{vT+4}, v{vT+3}, v{vT+3}")
    e(f"v_mul_f32 v{vT+4}, v{vT+4}, v{vT+3}")
    e(f"v_mov_b32 v{vT+5}, {f32(0.044715)}")
    e(f"v_fma_f32 v{vT+4}, v{vT+4}, v{vT+5}, v{vT+3}")
    e(f"v_mul_f32 v{vT+4}, {f32(-2.0*0.7978845608028654*1.4426950408889634)}, v{vT+4}")
    e(f"v_exp_f32 v{vT+4}, v{vT+4}")
    e("s_nop 0")
    e(f"v_add_f32 v{vT+4}, 1.0, v{vT+4}")
    e(f"v_rcp_f32 v{vT+4}, v{vT+4}")
    e("s_nop 0")
    e(f"v_mul_f32 v{vT+3}, v{vT+3}, v{vT+4}")
    e(f"v_cvt_pk_bf16_f32 v{vT+3}, v{vT+3}, v{vT+3}")
    e(f"ds_write_b32 v{vT}, v{vT+3} offset:{L_H + k*256}")
e("s_waitcnt lgkmcnt(0)")
e("s_lshl_b32 s8, s14, 7")
e(f"v_lshrrev_b32 v{vT}, 3, v{vN}")
e(f"v_lshlrev_b32 v{vT}, 6, v{vT}")
e(f"v_add_u32 v{vT}, s8, v{vT}")
e(f"v_add_u32 v{vT}, v{vT}, v{vG}")
e(f"v_lshlrev_b32 v{vT}, 2, v{vT}")
for i in range(16):
    e(f"ds_read_b32 v{108+i}, v{vT} offset:{L_H + i*16}")
e("s_movk_i32 s9, 1280")
e(f"v_mul_lo_u32 v{vT+1}, v{vG}, s9")
e(f"v_lshl_add_u32 v{vT+1}, v{vN}, 4, v{vT+1}")
e(f"v_add_u32 v{vT+1}, {L_BIG}, v{vT+1}")
e(f"v_add_u32 v{vT+2}, {8*5120}, v{vT+1}")
for k in range(20):
    e(f"v_mov_b32 v{48+k}, 0")
def w2read(i):
    base = 68 + 20 * (i % 2)
    ad, ii = (vT + 1, i) if i < 8 else (vT + 2, i - 8)
    for blk in range(5):
        e(f"ds_read_b128 v[{base+4*blk}:{base+4*blk+3}], v{ad} offset:{ii*5120 + blk*256}")
w2read(0)
for i in range(16):
    base = 68 + 20 * (i % 2)
    if i < 15:
        w2read(i + 1)
        e("s_waitcnt lgkmcnt(5)")
    else:
        e("s_waitcnt lgkmcnt(0)")
    for r in range(4):
        e(f"v_and_b32 v{vA+r}, v{108+i}, v{vM8+r}")
    e("s_nop 1")
    for blk in range(5):
        e(f"v_mfma_f32_16x16x32_bf16 v[{48+4*blk}:{48+4*blk+3}], v[{vA}:{vA+3}], v[{base+4*blk}:{base+4*blk+3}], v[{48+4*blk}:{48+4*blk+3}]")
    e("s_nop 7")
e(f"v_lshrrev_b32 v{vT}, 1, v{vG}")
e("s_lshl_b32 s8, s14, 1")
e(f"v_add_u32 v{vT}, s8, v{vT}")
e(f"s_mov_b32 s9, {WS_BATCH}")
e(f"v_mul_lo_u32 v{vT}, v{vT}, s9")
e("s_add_u32 s8, s7, 32")
e("s_mul_i32 s8, s8, 2560")
e(f"v_add_u32 v{vT}, s8, v{vT}")
e(f"v_lshl_add_u32 v{vT}, v{vN}, 5, v{vT}")
e(f"v_and_b32 v{vT+1}, 1, v{vG}")
e(f"v_lshl_add_u32 v{vT}, v{vT+1}, 4, v{vT}")
for blk in range(5):
    e(f"global_store_dwordx4 v{vT}, v[{48+4*blk}:{48+4*blk+3}], s[40:41] offset:{blk*512} sc1")
e("s_waitcnt vmcnt(0)")
e("s_mov_b64 exec, 3")
e("s_lshl_b32 s8, s14, 1")
e(f"v_add_u32 v{vT}, s8, v{vLANE}")
e(f"v_lshlrev_b32 v{vT+3}, 2, v{vT}")
e(f"v_mov_b32 v{vT+1}, 1")
e(f"global_atomic_add v{vT+2}, v{vT+3}, v{vT+1}, s[38:39] sc0")
e("s_waitcnt vmcnt(0)")
e(f"v_lshlrev_b32 v{vT+1}, v{vT}, v{vT+1}")
e(f"v_cmp_eq_u32 vcc, 58, v{vT+2}")
e("s_nop 1")
e(f"v_cndmask_b32 v{vT+1}, 0, v{vT+1}, vcc")
e(f"v_mov_b32 v{vT}, 0")
e(f"ds_or_b32 v{vT}, v{vT+1} offset:{L_FLAG}")
e("s_mov_b64 exec, -1")
e("s_setprio 0")
e("s_mov_b32 s13, 16")
e(f"v_lshlrev_b32 v{vT}, 4, v{vN}")
e(f"ds_read_b128 v[{vQ}:{vQ+3}], v{vT} offset:{L_QB}")
e("s_branch L_kinit")
lab("L_mid0")
e("s_mov_b32 s12, 0")
e("s_branch L_mid")
lab("L_mid1")
e("s_mov_b32 s12, 1")
lab("L_mid")
stamp(3)
wave_allreduce("v_max_f32", vMx)
e("s_lshl_b32 s8, s3, 2")
e(f"v_mov_b32 v{vT}, s8")
e("s_mov_b64 exec, 1")
e(f"ds_write_b32 v{vT}, v{vMx} offset:{L_ML}")
e("s_mov_b64 exec, -1")
e("s_waitcnt lgkmcnt(0)")
e("s_barrier")
for k in range(4):
    e(f"ds_read_b128 v[{vA+4*(k%2)}:{vA+4*(k%2)+3}], v{vZero} offset:{L_ML+16*k}")
    if k % 2 == 1:
        e("s_waitcnt lgkmcnt(0)")
        for j in range(0, 8, 2):
            e(f"v_max3_f32 v{vMx}, v{vMx}, v{vA+j}, v{vA+j+1}")

vWOoff = vT + 9
e("s_lshl_b32 s8, s3, 3")
e(f"v_add_u32 v{vWOoff}, s8, v{vG}")
e("s_movk_i32 s9, 1280")
e(f"v_mul_lo_u32 v{vWOoff}, v{vWOoff}, s9")
e(f"v_lshl_add_u32 v{vWOoff}, v{vN}, 4, v{vWOoff}")
for k in range(10):
    i, blk = divmod(k, 5)
    e(f"s_mov_b32 s6, {i*4*1280 + blk*256}")
    e(f"buffer_load_dwordx4 v[{vW+4*k}:{vW+4*k+3}], v{vWOoff}, s[{sWO}:{sWO+3}], s6 offen{NTW}")
e("s_cmp_eq_u32 s12, 1")
e("s_cbranch_scc1 L_v1")

def v_step(st):
    lab(f"L_v{st}")
    e(f"s_cmp_ge_u32 s{sA[st]}, 512")
    e("s_cbranch_scc1 L_vdone")
    e(f"s_sub_u32 s8, s{sA[st]}, 256")
    e("s_lshl_b32 s8, s8, 6")
    e(f"v_add_u32 v{vT}, s8, v{vSbV}")
    e(f"ds_read_b32 v{vP}, v{vT}")
    e("s_waitcnt lgkmcnt(0)")
    e(f"v_readfirstlane_b32 s{sA[st]}, v{vNext}")
    e(f"v_sub_f32 v{vP}, v{vP}, v{vMx}")
    e(f"v_exp_f32 v{vP}, v{vP}")
    e("s_nop 0")
    e(f"v_add_f32 v{vL}, v{vL}, v{vP}")
    e(f"v_cvt_pk_bf16_f32 v{vP}, v{vP}, v{vP}")
    e("s_waitcnt vmcnt(4)")
    e("s_nop 0")
    for i in range(4):
        a = vA + 4 * (i % 2)
        for r in range(4):
            e(f"v_and_b32_dpp v{a+r}, v{vP}, v{vM+r} row_newbcast:{i} row_mask:0xf bank_mask:0xf")
        if i % 2 == 1:
            e("s_nop 0")
            for u in range(2):
                aa = vA + 4 * u
                r0 = vRING + 16 * st + 4 * (i - 1 + u)
                e(f"v_mfma_f32_16x16x32_bf16 v[{vO}:{vO+3}], v[{aa}:{aa+3}], v[{r0}:{r0+3}], v[{vO}:{vO+3}]")
    issue_group(st, sA[st])
    grab()

v_step(0)
v_step(1)
e("s_branch L_v0")
lab("L_vdone")
wave_allreduce("v_add_f32", vL)
e(f"v_mul_f32 v{vL}, 0.25, v{vL}") if False else e(f"v_mul_f32 v{vL}, {f32(0.25)}, v{vL}")

stamp(4)
e(f"v_lshlrev_b32 v{vT+2}, 5, v{vN}")
e(f"v_lshl_add_u32 v{vT+2}, v{vG}, 4, v{vT+2}")
e("s_lshl_b32 s8, s3, 9")
e(f"v_add_u32 v{vT+2}, s8, v{vT+2}")
e("s_lshl_b32 s8, s3, 2")
e(f"v_mov_b32 v{vT+3}, s8")
e("s_nop 7")
e("s_mov_b32 exec_hi, 0")
e(f"ds_write_b128 v{vT+2}, v[{vO}:{vO+3}] offset:{L_QP}")
e("s_mov_b64 exec, 1")
e(f"ds_write_b32 v{vT+3}, v{vL} offset:{L_ML+64}")
e("s_mov_b64 exec, -1")
e("s_waitcnt lgkmcnt(0)")
e("s_barrier")
e("s_cmp_ge_u32 s3, 2")
e("s_cbranch_scc1 L_c_skip")
for k in range(4):
    e(f"ds_read_b128 v[{vRING+4*k}:{vRING+4*k+3}], v{vZero} offset:{L_ML+64+16*k}")
e(f"v_lshlrev_b32 v{vT}, 2, v0")
for k in range(16):
    e(f"ds_read_b32 v{vRING+16+k}, v{vT} offset:{L_QP+k*512}")
e("s_waitcnt lgkmcnt(0)")
for k in range(1, 16):
    e(f"v_add_f32 v{vRING}, v{vRING}, v{vRING+k}")
    e(f"v_add_f32 v{vRING+16}, v{vRING+16}, v{vRING+16+k}")
e(f"v_rcp_f32 v{vT+4}, v{vRING}")
e("s_nop 0")
e(f"v_mul_f32 v{vT+5}, v{vRING+16}, v{vT+4}")
e(f"v_fma_f32 v{vT+3}, -v{vT+5}, v{vRING}, v{vRING+16}")
e(f"v_fma_f32 v{vT+3}, v{vT+3}, v{vT+4}, v{vT+5}")
e(f"v_cvt_pk_bf16_f32 v{vT+3}, v{vT+3}, v{vT+3}")
e(f"ds_write_b32 v{vT}, v{vT+3} offset:{L_OB}")
e("s_waitcnt lgkmcnt(0)")
lab("L_c_skip")
e("s_barrier")

e("s_lshl_b32 s8, s3, 3")
e(f"v_add_u32 v{vT}, s8, v{vG}")
e(f"v_lshlrev_b32 v{vT}, 2, v{vT}")
e(f"ds_read_b32 v{vT+1}, v{vT} offset:{L_OB}")
e(f"ds_read_b32 v{vT+2}, v{vT} offset:{L_OB+16}")
for k in range(20):
    e(f"v_mov_b32 v{vPACC+k}, 0")
e("s_waitcnt lgkmcnt(0)")
for i in range(2):
    a = vA + 4 * i
    for r in range(4):
        e(f"v_and_b32 v{a+r}, v{vT+1+i}, v{vM+r}")
e("s_waitcnt vmcnt(0)")
e("s_nop 0")
for i in range(2):
    a = vA + 4 * i
    for blk in range(5):
        k = i * 5 + blk
        e(f"v_mfma_f32_16x16x32_bf16 v[{vPACC+4*blk}:{vPACC+4*blk+3}], v[{a}:{a+3}], v[{vW+4*k}:{vW+4*k+3}], v[{vPACC+4*blk}:{vPACC+4*blk+3}]")
e(f"v_lshlrev_b32 v{vT+2}, 5, v{vN}")
e(f"v_lshl_add_u32 v{vT+2}, v{vG}, 4, v{vT+2}")
e("s_mul_i32 s8, s3, 2560")
e(f"v_add_u32 v{vT+2}, s8, v{vT+2}")
e("s_nop 7")
e("s_mov_b32 exec_hi, 0")
for blk in range(5):
    e(f"ds_write_b128 v{vT+2}, v[{vPACC+4*blk}:{vPACC+4*blk+3}] offset:{L_BIG+blk*512}")
e("s_mov_b64 exec, -1")
e("s_waitcnt lgkmcnt(0)")
e("s_barrier")
e("s_cmp_ge_u32 s3, 3")
e("s_cbranch_scc1 L_s_skip")
e("v_cmp_gt_u32 vcc, 160, v0")
e("s_and_saveexec_b64 s[12:13], vcc")
e("s_cbranch_execz L_s_skip2")
e(f"v_lshlrev_b32 v{vT}, 4, v0")
e(f"v_add_u32 v{vT+1}, {L_BIG}, v{vT}")
for k in range(16):
    e(f"ds_read_b128 v[{vRING+4*k}:{vRING+4*k+3}], v{vT+1} offset:{k*2560}")
e(f"s_mul_i32 s8, s4, {WS_BATCH}")
e("s_mul_i32 s9, s5, 2560")
e("s_add_u32 s8, s8, s9")
e(f"v_add_u32 v{vT}, s8, v{vT}")
e("s_waitcnt lgkmcnt(0)")
for k in range(1, 16):
    for r in range(4):
        e(f"v_add_f32 v{vRING+r}, v{vRING+r}, v{vRING+4*k+r}")
e(f"global_store_dwordx4 v{vT}, v[{vRING}:{vRING+3}], s[40:41] sc1")
e("s_waitcnt vmcnt(0)")
lab("L_s_skip2")
e("s_mov_b64 exec, s[12:13]")
lab("L_s_skip")
e("s_barrier")
e("s_cmp_lg_u32 s3, 0")
e("s_cbranch_scc1 L_sig_done")
e("s_mov_b64 exec, 1")
stamp(5)
e("s_lshl_b32 s8, s4, 2")
e(f"v_mov_b32 v{vT}, s8")
e(f"v_mov_b32 v{vT+1}, 1")
e(f"global_atomic_add v{vT+2}, v{vT}, v{vT+1}, s[38:39] sc0")
e("s_waitcnt vmcnt(0)")
e(f"v_readfirstlane_b32 s8, v{vT+2}")
e("s_lshl_b32 s9, 1, s4")
e("s_cmp_eq_u32 s8, 58")
e("s_cselect_b32 s9, s9, 0")
e(f"v_mov_b32 v{vT}, 0")
e(f"v_mov_b32 v{vT+1}, s9")
e(f"ds_or_b32 v{vT}, v{vT+1} offset:{L_FLAG}")
e("s_waitcnt lgkmcnt(0)")
e("s_mov_b64 exec, -1")
lab("L_sig_done")
e("s_barrier")
e(f"v_mov_b32 v{vT}, 0")
e(f"ds_read_b32 v{vT+1}, v{vT} offset:{L_FLAG}")
e("s_waitcnt lgkmcnt(0)")
e(f"v_readfirstlane_b32 s7, v{vT+1}")
stamp(6)
e("s_cmp_eq_u32 s7, 0")
e("s_cbranch_scc1 L_end2")

lab("L_fin_loop")
e("s_ff1_i32_b32 s14, s7")
e("s_lshl_b32 s8, 1, s14")
e("s_xor_b32 s7, s7, s8")
e(f"s_mul_i32 s8, s14, {WS_BATCH}")
e("s_add_u32 s10, s40, s8")
e("s_addc_u32 s11, s41, 0")
srd(sWS, 10, 11, WS_BATCH)
e(f"v_mul_u32_u24 v{vT}, 52429, v0")
e(f"v_lshrrev_b32 v{vT}, 23, v{vT}")
e(f"v_mul_u32_u24 v{vT+1}, 160, v{vT}")
e(f"v_sub_u32 v{vT+1}, v0, v{vT+1}")
e(f"v_lshlrev_b32 v{vT+1}, 4, v{vT+1}")
e("s_movk_i32 s9, 2560")
e(f"v_mul_lo_u32 v{vT+2}, v{vT}, s9")
e(f"v_add_u32 v{vT+2}, v{vT+2}, v{vT+1}")
e("v_cmp_gt_u32 vcc, 960, v0")
e("s_and_saveexec_b64 s[12:13], vcc")
e("s_cbranch_execz L_fin_a")
for j in range(10):
    e(f"s_mov_b32 s6, {j*6*2560}")
    e(f"buffer_load_dwordx4 v[{vRING+4*j}:{vRING+4*j+3}], v{vT+2}, s[{sWS}:{sWS+3}], s6 offen sc1")
e(f"v_cmp_gt_u32 vcc, 2, v{vT}")
e("s_waitcnt vmcnt(0)")
S4, Z4 = vRING, vRING + 24
for j in range(1, 5):
    for r in range(4):
        e(f"v_add_f32 v{S4+r}, v{S4+r}, v{vRING+4*j+r}")
for j in range(7, 10):
    for r in range(4):
        e(f"v_add_f32 v{Z4+r}, v{Z4+r}, v{vRING+4*j+r}")
for r in range(4):
    e(f"v_cndmask_b32 v{vT+4}, 0, v{vRING+20+r}, vcc")
    e(f"v_cndmask_b32 v{vT+5}, v{vRING+20+r}, 0, vcc")
    e(f"v_add_f32 v{S4+r}, v{S4+r}, v{vT+4}")
    e(f"v_add_f32 v{Z4+r}, v{Z4+r}, v{vT+5}")
e("s_movk_i32 s9, 5120")
e(f"v_mul_lo_u32 v{vT+2}, v{vT}, s9")
e(f"v_add_u32 v{vT+2}, v{vT+2}, v{vT+1}")
e(f"ds_write_b128 v{vT+2}, v[{S4}:{S4+3}] offset:{L_BIG}")
e(f"ds_write_b128 v{vT+2}, v[{Z4}:{Z4+3}] offset:{L_BIG+2560}")
e("s_waitcnt lgkmcnt(0)")
lab("L_fin_a")
e("s_mov_b64 exec, s[12:13]")
e("s_barrier")
e("v_cmp_gt_u32 vcc, 640, v0")
e("s_and_saveexec_b64 s[12:13], vcc")
e("s_cbranch_execz L_fin_b")
e(f"v_lshlrev_b32 v{vT}, 2, v0")
for k in range(6):
    e(f"ds_read_b32 v{vRING+k}, v{vT} offset:{L_BIG+k*5120}")
    e(f"ds_read_b32 v{vRING+8+k}, v{vT} offset:{L_BIG+k*5120+2560}")
e(f"v_lshlrev_b32 v{vT+1}, 1, v0")
e(f"global_load_ushort v{vT+2}, v{vT+1}, s[34:35]")
e("s_mul_i32 s8, s14, 1280")
e(f"v_add_u32 v{vT+1}, s8, v{vT+1}")
e(f"global_load_ushort v{vT+3}, v{vT+1}, s[16:17]")
e("s_waitcnt lgkmcnt(0)")
for k in range(1, 6):
    e(f"v_add_f32 v{vRING}, v{vRING}, v{vRING+k}")
    e(f"v_add_f32 v{vRING+8}, v{vRING+8}, v{vRING+8+k}")
bf16r(vRING, vRING)
bf16r(vRING + 8, vRING + 8)
e("s_waitcnt vmcnt(0)")
e(f"v_lshlrev_b32 v{vT+2}, 16, v{vT+2}")
e(f"v_lshlrev_b32 v{vT+3}, 16, v{vT+3}")
e(f"v_add_f32 v{vRING+8}, v{vRING+8}, v{vT+2}")
bf16r(vRING + 8, vRING + 8)
e(f"v_mul_f32 v{vT+4}, {f32(-1.4426950408889634)}, v{vRING+8}")
e(f"v_exp_f32 v{vT+4}, v{vT+4}")
e("s_nop 0")
e(f"v_add_f32 v{vT+4}, 1.0, v{vT+4}")
e(f"v_rcp_f32 v{vT+4}, v{vT+4}")
e("s_nop 0")
e(f"v_mul_f32 v{vRING+8}, v{vRING+8}, v{vT+4}")
bf16r(vRING + 8, vRING + 8)
e(f"v_mul_f32 v{vRING}, v{vRING}, v{vRING+8}")
bf16r(vRING, vRING)
e(f"v_add_f32 v{vRING}, v{vRING}, v{vT+3}")
e(f"v_cvt_pk_bf16_f32 v{vRING}, v{vRING}, v{vRING}")
e(f"global_store_short v{vT+1}, v{vRING}, s[36:37]")
e("s_waitcnt vmcnt(0)")
lab("L_fin_b")
e("s_mov_b64 exec, s[12:13]")
e("s_barrier")
e("s_cmp_lg_u32 s7, 0")
e("s_cbranch_scc1 L_fin_loop")
lab("L_end2")
if OPT["stamps"]:
    stamp(7)
    e("s_cmp_lg_u32 s3, 0")
    e("s_cbranch_scc1 L_end")
    e("s_mov_b64 exec, 1")
    e("s_lshl_b32 s8, s2, 6")
    e(f"s_add_u32 s8, s8, {32<<20}")
    e(f"v_mov_b32 v{vT}, s8")
    for j in range(8):
        e(f"v_mov_b32 v{vT+2}, s{86+2*j}")
        e(f"v_mov_b32 v{vT+3}, s{87+2*j}")
        e(f"global_store_dwordx2 v{vT}, v[{vT+2}:{vT+3}], s[40:41] offset:{8*j}")
        e("s_nop 1")
lab("L_end")
e("s_endpgm")

out += "\n".join(lines) + "\n"
out += f""".section .rodata,"a"
.p2align 6
.amdhsa_kernel {NAME}_kernel
  .amdhsa_next_free_vgpr 128
  .amdhsa_next_free_sgpr 102
  .amdhsa_accum_offset 128
  .amdhsa_group_segment_fixed_size 0
  .amdhsa_kernarg_size 104
  .amdhsa_user_sgpr_count 2
  .amdhsa_user_sgpr_kernarg_segment_ptr 1
  .amdhsa_system_sgpr_workgroup_id_x 1
.end_amdhsa_kernel
"""
open(sys.argv[1], "w").write(out)
```

```python
import sys, struct

NAME = "recurrent_scan__mha_block_cached__dense_activation_gelu__decode"

def f32(x):
    return "0x%08x" % struct.unpack("<I", struct.pack("<f", x))[0]

LOG2E = f32(1.4426950408889634)
SCALE = f32(128 ** -0.5)
INV640 = f32(1.0 / 640)
EPS = f32(1e-5)

OPT = dict(ring=8, nt=1, interleave=0, stamps=0, map=0, nw=16, nowq=0, nowo=0, noffn=0, ntw=1, sc1w=0, ffnst=0, fpar=0, rot=0, nwe=16, ldspre=1, woearly=0)
for a in sys.argv[2:]:
    k, v = a.split("=")
    OPT[k] = int(v)
R = OPT["ring"]
NT = " nt" if OPT["nt"] else ""
NTW = (" nt" if OPT["ntw"] else "") + (" sc1" if OPT["sc1w"] else "")

L_XN = 0
L_QP = 20480
L_QB = 28672
L_ML = 28928
L_FLAG = 29056
L_OB = 29184
L_H = 30720
L_BIG = 32768
L_HP = 32768 + 81920
L_S = 32768 + 81920 + 32768
L_CNT = 29060
L_FSYNC = 29064
LDS_BYTES = 163840

WS_BATCH = 59 * 2560

lines = []
def e(s):
    lines.append("    " + s)
def lab(s):
    lines.append(s + ":")
def c(s):
    lines.append("    ; " + s)

sK, sV, sX, sWQ, sWO, sW1, sW2, sWS = 44, 48, 52, 56, 60, 64, 68, 72

def srd(s, lo, hi, nrec):
    e(f"s_mov_b32 s{s}, s{lo}")
    e(f"s_and_b32 s{s+1}, s{hi}, 0xffff")
    e(f"s_mov_b32 s{s+2}, {nrec}")
    e(f"s_mov_b32 s{s+3}, 0x00020000")

vLANE, vG, vN = 1, 2, 3
vM = 4
vM8 = 8
vKV = 12
vB1 = 13
vQ = 16
vS = 20
vO = 24
vA = 28
vT = 36
vRING = 48
vW = 80
vACC = vW + 40
vPACC = vRING

def bf16r(dst, src, tmp=None):
    e(f"v_cvt_pk_bf16_f32 v{dst}, v{src}, v{src}")
    e(f"v_and_b32 v{dst}, 0xffff0000, v{dst}")

def row_allreduce(op, v, t):
    for sh in (8, 4, 2, 1):
        e("s_nop 1")
        e(f"{op}_dpp v{v}, v{v}, v{v} row_ror:{sh} row_mask:0xf bank_mask:0xf")

def wave_allreduce(op, v):
    row_allreduce(op, v, None)
    e("s_nop 1")
    e(f"v_readlane_b32 s8, v{v}, 0")
    e(f"v_readlane_b32 s9, v{v}, 16")
    e(f"v_readlane_b32 s10, v{v}, 32")
    e(f"v_readlane_b32 s11, v{v}, 48")
    e("s_nop 1")
    e(f"v_mov_b32 v{v}, s8")
    e(f"{op} v{v}, s9, v{v}")
    e(f"{op} v{v}, s10, v{v}")
    e(f"{op} v{v}, s11, v{v}")

def stamp(j):
    if OPT["stamps"]:
        e(f"s_memrealtime s[{86+2*j}:{87+2*j}]")
        e("s_waitcnt lgkmcnt(0)")

hdr = open("cdna_kernels/%s.s.ref" % NAME).read().split("; Override launch")[0]
out = hdr
out += f"; @launch grid=(256,1,1) block=(1024,1,1) lds={LDS_BYTES}\n"
out += f""".amdgcn_target "amdgcn-amd-amdhsa--gfx950"
.text
.globl {NAME}_kernel
.p2align 8
.type {NAME}_kernel,@function
{NAME}_kernel:
"""

e("s_cmp_ge_u32 s2, 256")
e("s_cbranch_scc1 L_end")
stamp(0)
e("s_load_dwordx16 s[16:31], s[0:1], 0")
e("s_load_dwordx8 s[32:39], s[0:1], 64")
e("s_load_dwordx2 s[40:41], s[0:1], 96")
e(f"v_and_b32 v{vLANE}, 63, v0")
e("v_lshrrev_b32 v2, 6, v0")
e("s_nop 0")
e("v_readfirstlane_b32 s3, v2")
e(f"v_lshrrev_b32 v{vG}, 4, v{vLANE}")
e(f"v_and_b32 v{vN}, 15, v{vLANE}")
if OPT["map"] == 0:
    e("s_lshr_b32 s4, s2, 5")
    e("s_and_b32 s5, s2, 31")
else:
    e("s_and_b32 s4, s2, 7")
    e("s_lshr_b32 s5, s2, 3")
e("s_lshl_b32 s15, s4, 5")
e("s_add_u32 s15, s15, s5")

e(f"v_and_b32 v{vT}, 7, v{vN}")
e(f"v_mov_b32 v{vT+1}, 0xffff")
e(f"v_mov_b32 v{vT+2}, 0xffff0000")
for r in range(4):
    for (dst, src) in ((vM + r, vN), (vM8 + r, vT)):
        e(f"v_mov_b32 v{dst}, 0")
        e(f"v_cmp_eq_u32 vcc, {2*r}, v{src}")
        e("s_nop 1")
        e(f"v_cndmask_b32 v{dst}, v{dst}, v{vT+1}, vcc")
        e(f"v_cmp_eq_u32 vcc, {2*r+1}, v{src}")
        e("s_nop 1")
        e(f"v_cndmask_b32 v{dst}, v{dst}, v{vT+2}, vcc")
e("s_waitcnt lgkmcnt(0)")
e("s_lshl_b32 s8, s15, 20")
e("s_add_u32 s10, s18, s8")
e("s_addc_u32 s11, s19, 0")
srd(sK, 10, 11, 1 << 20)
e("s_add_u32 s10, s20, s8")
e("s_addc_u32 s11, s21, 0")
srd(sV, 10, 11, 1 << 20)
srd(sX, 16, 17, 10240)
e("s_lshl_b32 s8, s5, 8")
e("s_add_u32 s10, s22, s8")
e("s_addc_u32 s11, s23, 0")
srd(sWQ, 10, 11, 0)
e(f"s_sub_u32 s{sWQ+2}, {640*8192}, s8")
if OPT["nowq"]: e(f"s_mov_b32 s{sWQ+2}, 0")
e("s_mul_i32 s8, s5, 163840")
e("s_add_u32 s10, s24, s8")
e("s_addc_u32 s11, s25, 0")
srd(sWO, 10, 11, 0 if OPT["nowo"] else 163840)

vX = vT + 4
e("s_and_b32 s8, s3, 7")
e("s_mul_i32 s8, s8, 1280")
e(f"v_lshlrev_b32 v{vT}, 4, v{vLANE}")
e(f"v_lshlrev_b32 v{vT+1}, 2, v{vLANE}")
e(f"buffer_load_dwordx4 v[{vX}:{vX+3}], v{vT}, s[{sX}:{sX+3}], s8 offen")
e(f"buffer_load_dword v{vX+4}, v{vT+1}, s[{sX}:{sX+3}], s8 offen offset:1024")
e("s_mul_i32 s8, s3, 40")
e(f"v_add_u32 v{vT+2}, s8, v{vG}")
e(f"v_lshlrev_b32 v{vT+2}, 13, v{vT+2}")
e(f"v_lshl_add_u32 v{vT+2}, v{vN}, 4, v{vT+2}")
for i in range(10):
    e(f"s_mov_b32 s6, {i*32768}")
    e(f"buffer_load_dwordx4 v[{vW+4*i}:{vW+4*i+3}], v{vT+2}, s[{sWQ}:{sWQ+3}], s6 offen{NTW}")
e(f"v_lshlrev_b32 v{vKV}, 4, v{vLANE}")
sA = (42, 43)
sCUR = 76
e("s_lshr_b32 s7, s2, 1")
e("s_and_b32 s8, s2, 1")
e(f"s_cmp_eq_u32 s8, {OPT['fpar']}")
e("s_cselect_b32 s7, s7, 255")
e("s_cmp_lt_u32 s7, 27")
e("s_cselect_b32 s13, 12, 16")
e("s_cselect_b32 s101, 0, 1")
e(f"s_cselect_b32 s98, 0, {OPT['ldspre']}")
e("s_and_b32 s8, s2, 1")
e("s_xor_b32 s8, s8, 1")
e("s_and_b32 s101, s101, s8")
e("s_cmp_eq_u32 s101, 1")
e(f"s_cselect_b32 s13, {OPT['nwe']}, s13")
e(f"s_add_u32 s{sA[1]}, s3, s13")
e("s_cmp_lt_u32 s3, s13")
e(f"s_cselect_b32 s{sA[0]}, s3, 1024")
e(f"s_cselect_b32 s{sA[1]}, s{sA[1]}, 1024")
e(f"s_mul_i32 s100, s2, {OPT['rot']}")
e(f"s_mov_b32 s{sCUR+2}, {1<<20}")
e(f"s_mov_b32 s{sCUR+3}, 0x00020000")

igc = [0]
def issue_group(st, sid):
    igc[0] += 1
    e(f"s_cmp_ge_u32 s{sid}, 512")
    e(f"s_cbranch_scc1 L_ig{igc[0]}")
    e(f"s_cmp_lt_u32 s{sid}, 256")
    e(f"s_cselect_b64 s[{sCUR}:{sCUR+1}], s[{sK}:{sK+1}], s[{sV}:{sV+1}]")
    e(f"s_add_u32 s6, s{sid}, s100")
    e("s_and_b32 s6, s6, 255")
    e("s_lshl_b32 s6, s6, 12")
    for i in range(4):
        r = vRING + 16 * st + 4 * i
        e(f"buffer_load_dwordx4 v[{r}:{r+3}], v{vKV}, s[{sCUR}:{sCUR+3}], s6 offen offset:{1024*i}{NT}")
    lab(f"L_ig{igc[0]}")

issue_group(0, sA[0])
issue_group(1, sA[1])
e("s_cmp_lt_u32 s3, s13")
e("s_cselect_b32 s98, s98, 0")
e("s_cmp_eq_u32 s98, 0")
e("s_cbranch_scc1 L_nopre")
e("s_lshl_b32 s99, s13, 1")
e("s_add_u32 s99, s99, s3")
e("s_lshl_b32 s6, s99, 12")
e("s_lshl_b32 s8, s3, 12")
for i in range(4):
    e(f"s_add_u32 s9, s8, {L_BIG + i*1024}")
    e("s_mov_b32 m0, s9")
    e(f"s_add_u32 s10, s6, {i*1024}")
    e(f"buffer_load_dwordx4 v{vKV}, s[{sK}:{sK+3}], s10 offen{NT} lds")
lab("L_nopre")
e(f"v_mov_b32 v{vT+2}, 0")
e("s_cmp_lt_u32 s7, 27")
e(f"s_cselect_b32 s8, 2, {2 + OPT['ldspre']}")
e("s_mul_i32 s8, s8, s13")
e(f"v_mov_b32 v{vT+3}, s8")
e(f"ds_write_b32 v{vT+2}, v{vT+3} offset:{L_CNT}")
e(f"ds_write_b32 v{vT+2}, v{vT+2} offset:{L_FLAG}")
e(f"ds_write_b32 v{vT+2}, v{vT+2} offset:{L_FSYNC}")

e("s_cmp_lt_u32 s3, s13")
e("s_cbranch_scc1 L_w1a")
e("s_waitcnt vmcnt(10)")
lab("L_w1a")
e("s_cmp_eq_u32 s98, 1")
e("s_cbranch_scc1 L_w1b")
e(f"s_waitcnt vmcnt({10+R})")
lab("L_w1b")
e(f"s_waitcnt vmcnt({14+R})")
U = [vA + k for k in range(8)] + [vT + 9, vT + 10]
for k in range(5):
    e(f"v_lshlrev_b32 v{U[2*k]}, 16, v{vX+k}")
    e(f"v_and_b32 v{U[2*k+1]}, 0xffff0000, v{vX+k}")
vSum = vT
e(f"v_add_f32 v{vSum}, v{U[0]}, v{U[1]}")
for k in range(2, 10):
    e(f"v_add_f32 v{vSum}, v{vSum}, v{U[k]}")
wave_allreduce("v_add_f32", vSum)
e(f"v_mul_f32 v{vSum}, {INV640}, v{vSum}")
vVar = vT + 1
vD = vT + 2
e(f"v_sub_f32 v{vD}, v{U[0]}, v{vSum}")
e(f"v_mul_f32 v{vVar}, v{vD}, v{vD}")
for k in range(1, 10):
    e(f"v_sub_f32 v{vD}, v{U[k]}, v{vSum}")
    e(f"v_fmac_f32 v{vVar}, v{vD}, v{vD}")
wave_allreduce("v_add_f32", vVar)
e(f"v_mul_f32 v{vVar}, {INV640}, v{vVar}")
bf16r(vSum, vSum)
bf16r(vVar, vVar)
e(f"v_add_f32 v{vVar}, {EPS}, v{vVar}")
bf16r(vVar, vVar)
e(f"v_sqrt_f32 v{vVar}, v{vVar}")
e("s_nop 0")
bf16r(vVar, vVar)
vRi = vT + 3
e(f"v_rcp_f32 v{vRi}, v{vVar}")
e("s_nop 0")
for k in range(10):
    u = U[k]
    e(f"v_sub_f32 v{u}, v{u}, v{vSum}")
    bf16r(u, u)
    e(f"v_mul_f32 v{vD}, v{u}, v{vRi}")
    e(f"v_fma_f32 v{u}, -v{vD}, v{vVar}, v{u}")
    e(f"v_fma_f32 v{u}, v{u}, v{vRi}, v{vD}")
    e(f"v_cvt_pk_bf16_f32 v{u}, v{u}, v{u}")
e("s_and_b32 s8, s3, 7")
e("s_mul_i32 s8, s8, 2560")
e(f"v_lshlrev_b32 v{vD}, 5, v{vLANE}")
e(f"v_add_u32 v{vD}, s8, v{vD}")
e(f"ds_write_b128 v{vD}, v[{vA}:{vA+3}] offset:{L_XN}")
e(f"ds_write_b128 v{vD}, v[{vA+4}:{vA+7}] offset:{L_XN+16}")
e(f"v_lshlrev_b32 v{vD}, 3, v{vLANE}")
e(f"v_add_u32 v{vD}, s8, v{vD}")
e(f"v_mov_b32 v{vT+6}, v{vT+9}")
e(f"v_mov_b32 v{vT+7}, v{vT+10}")
e(f"ds_write_b64 v{vD}, v[{vT+6}:{vT+7}] offset:{L_XN+2048}")
e("s_waitcnt lgkmcnt(0)")
e("s_barrier")

e("s_mul_i32 s8, s4, 640")
e("s_mul_i32 s9, s3, 40")
e("s_add_u32 s8, s8, s9")
e(f"v_lshl_add_u32 v{vT}, v{vN}, 2, v{vG}")
e(f"v_add_u32 v{vT}, s8, v{vT}")
e(f"v_lshlrev_b32 v{vT}, 2, v{vT}")
e(f"ds_read_b32 v{vT+1}, v{vT} offset:{L_XN}")
for r in range(4):
    e(f"v_mov_b32 v{vO+r}, 0")
e("s_cmp_lt_u32 s3, s13")
e("s_cbranch_scc1 L_w2a")
e("s_waitcnt vmcnt(0)")
lab("L_w2a")
e("s_cmp_eq_u32 s98, 1")
e("s_cbranch_scc1 L_w2b")
e(f"s_waitcnt vmcnt({R})")
lab("L_w2b")
e(f"s_waitcnt vmcnt({R+4}) lgkmcnt(0)")
e("s_nop 1")
for i in range(10):
    a = vA + 4 * (i % 2)
    for r in range(4):
        e(f"v_and_b32_dpp v{a+r}, v{vT+1}, v{vM+r} row_newbcast:{i} row_mask:0xf bank_mask:0xf")
    e("s_nop 1")
    e(f"v_mfma_f32_16x16x32_bf16 v[{vO}:{vO+3}], v[{a}:{a+3}], v[{vW+4*i}:{vW+4*i+3}], v[{vO}:{vO+3}]")
e(f"v_lshlrev_b32 v{vT+2}, 5, v{vN}")
e(f"v_lshl_add_u32 v{vT+2}, v{vG}, 4, v{vT+2}")
e("s_lshl_b32 s8, s3, 9")
e(f"v_add_u32 v{vT+2}, s8, v{vT+2}")
e("s_nop 7")
e("s_mov_b32 exec_hi, 0")
e(f"ds_write_b128 v{vT+2}, v[{vO}:{vO+3}] offset:{L_QP}")
e("s_mov_b64 exec, -1")
e("s_waitcnt lgkmcnt(0)")
e("s_barrier")
e("s_cmp_ge_u32 s3, 2")
e("s_cbranch_scc1 L_q_skip")
e(f"v_lshlrev_b32 v{vT}, 2, v0")
for k in range(16):
    e(f"ds_read_b32 v{vRING+0 if False else vW+k}, v{vT} offset:{L_QP+k*512}")
e("s_waitcnt lgkmcnt(0)")
for k in range(1, 16):
    e(f"v_add_f32 v{vW}, v{vW}, v{vW+k}")
e(f"v_cvt_pk_bf16_f32 v{vW}, v{vW}, v{vW}")
e(f"v_lshlrev_b32 v{vT}, 1, v0")
e(f"ds_write_b16 v{vT}, v{vW} offset:{L_QB}")
e("s_waitcnt lgkmcnt(0)")
lab("L_q_skip")
e("s_barrier")
e(f"v_lshlrev_b32 v{vT}, 4, v{vN}")
e(f"ds_read_b128 v[{vQ}:{vQ+3}], v{vT} offset:{L_QB}")

stamp(1)
stamp(2)
vNext, vSb, vSbV, vOne = 14, 15, vS, vS + 1
vMx, vL, vP = vT + 10, vT + 11, vS + 2
vZero = vS + 3
lab("L_kinit")
e("s_waitcnt lgkmcnt(0)")
for r in range(4):
    e(f"v_mov_b32 v{vO+r}, 0")
e(f"v_mov_b32 v{vOne}, 1")
e(f"v_mov_b32 v{vZero}, 0")
e(f"v_mov_b32 v{vMx}, 0xff800000")
e(f"v_mov_b32 v{vL}, 0")
e(f"v_lshl_add_u32 v{vSb}, v{vN}, 2, v{vG}")
e(f"v_lshlrev_b32 v{vSb}, 2, v{vSb}")
e(f"v_add_u32 v{vSb}, {L_S}, v{vSb}")
e(f"v_and_b32 v{vSbV}, 3, v{vN}")
e(f"v_lshl_add_u32 v{vSbV}, v{vSbV}, 2, v{vG}")
e(f"v_lshlrev_b32 v{vSbV}, 2, v{vSbV}")
e(f"v_add_u32 v{vSbV}, {L_S}, v{vSbV}")
e(f"v_and_b32 v{vT}, 3, v{vN}")
for k in (1, 2, 3):
    e(f"v_cmp_eq_u32 s[{78+2*k}:{79+2*k}], {k}, v{vT}")

def grab():
    e("s_mov_b64 exec, 1")
    e(f"ds_add_rtn_u32 v{vNext}, v{vZero}, v{vOne} offset:{L_CNT}")
    e("s_mov_b64 exec, -1")
e("s_cmp_ge_u32 s3, s13")
e("s_cselect_b32 s8, s101, 0")
e("s_cmp_eq_u32 s8, 1")
e("s_cbranch_scc1 L_mid0")
e("s_cmp_ge_u32 s3, s13")
e("s_cbranch_scc1 L_ffn")
grab()
e(f"s_cmp_lt_u32 s{sA[0]}, 1024")
e("s_cbranch_scc1 L_kpre")
for st in range(2):
    e("s_waitcnt lgkmcnt(0)")
    e(f"v_readfirstlane_b32 s{sA[st]}, v{vNext}")
    e("s_nop 3")
    issue_group(st, sA[st])
    grab()

def wo_loads():
    vWOoff = vT + 9
    e("s_lshl_b32 s8, s3, 3")
    e(f"v_add_u32 v{vWOoff}, s8, v{vG}")
    e("s_movk_i32 s9, 1280")
    e(f"v_mul_lo_u32 v{vWOoff}, v{vWOoff}, s9")
    e(f"v_lshl_add_u32 v{vWOoff}, v{vN}, 4, v{vWOoff}")
    for k in range(10):
        i, blk = divmod(k, 5)
        e(f"s_mov_b32 s6, {i*4*1280 + blk*256}")
        e(f"buffer_load_dwordx4 v[{vW+4*k}:{vW+4*k+3}], v{vWOoff}, s[{sWO}:{sWO+3}], s6 offen{NTW}")

def k_dots(base):
    T = [vT + i for i in range(4)]
    for i in range(4):
        e(f"v_mov_b32 v{T[i]}, 0")
    for k in range(4):
        for i in range(4):
            e(f"v_dot2c_f32_bf16 v{T[i]}, v{base+4*i+k}, v{vQ+k}")

def k_finish():
    T = [vT + i for i in range(4)]
    for sh in (8, 4, 2, 1):
        for i in range(4):
            e(f"v_add_f32_dpp v{T[i]}, v{T[i]}, v{T[i]} row_ror:{sh} row_mask:0xf bank_mask:0xf")
    for k in (1, 2, 3):
        e(f"v_cndmask_b32 v{T[0]}, v{T[0]}, v{T[k]}, s[{78+2*k}:{79+2*k}]")
    bf16r(T[0], T[0])
    e(f"v_mul_f32 v{T[0]}, {SCALE}, v{T[0]}")
    bf16r(T[0], T[0])
    e(f"v_mul_f32 v{T[0]}, {LOG2E}, v{T[0]}")
    e(f"v_max_f32 v{vMx}, v{vMx}, v{T[0]}")
    e("s_mov_b32 exec_lo, 0x000f000f")
    e("s_mov_b32 exec_hi, 0x000f000f")
    e(f"ds_write_b32 v{vT+4}, v{T[0]}")
    e("s_mov_b64 exec, -1")

lab("L_kpre")
e("s_cmp_eq_u32 s98, 0")
e("s_cbranch_scc1 L_kwo")
e("s_mov_b32 s98, 0")
e("s_lshl_b32 s8, s3, 12")
e(f"v_add_u32 v{vT+5}, s8, v{vKV}")
e("s_waitcnt vmcnt(0)")
for i in range(4):
    e(f"ds_read_b128 v[{vW+4*i}:{vW+4*i+3}], v{vT+5} offset:{L_BIG + 1024*i}")
e("s_lshl_b32 s8, s99, 6")
e(f"v_add_u32 v{vT+4}, s8, v{vSb}")
e("s_waitcnt lgkmcnt(0)")
k_dots(vW)
e("s_nop 2")
k_finish()
lab("L_kwo")
if OPT['woearly']: wo_loads()

def k_step(st):
    lab(f"L_k{st}")
    e(f"s_cmp_ge_u32 s{sA[st]}, 256")
    e(f"s_cbranch_scc1 L_mid{st}")
    e("s_waitcnt vmcnt(4)")
    k_dots(vRING + 16 * st)
    e("s_waitcnt lgkmcnt(0)")
    e(f"v_readfirstlane_b32 s9, v{vNext}")
    e(f"s_lshl_b32 s8, s{sA[st]}, 6")
    e(f"v_add_u32 v{vT+4}, s8, v{vSb}")
    e(f"s_mov_b32 s{sA[st]}, s9")
    issue_group(st, sA[st])
    grab()
    k_finish()

k_step(0)
k_step(1)
e("s_branch L_k0")
lab("L_ffn")
e("s_setprio 3")
e("s_sub_u32 s14, s3, 12")
e("s_lshl_b32 s8, s7, 7")
e("s_add_u32 s10, s28, s8")
e("s_addc_u32 s11, s29, 0")
srd(sW1, 10, 11, 0)
e(f"s_sub_u32 s{sW1+2}, {640*3456}, s8")
if OPT["noffn"]: e(f"s_mov_b32 s{sW1+2}, 0")
e("s_mul_i32 s8, s7, 81920")
e("s_add_u32 s10, s32, s8")
e("s_addc_u32 s11, s33, 0")
srd(sW2, 10, 11, 0 if OPT["noffn"] else 81920)
e(f"v_lshrrev_b32 v{vT+3}, 3, v{vN}")
e(f"v_lshl_add_u32 v{vT+3}, v{vG}, 1, v{vT+3}")
e("s_mul_i32 s8, s14, 160")
e(f"v_add_u32 v{vT}, s8, v{vT+3}")
e("s_movk_i32 s9, 3456")
e(f"v_mul_lo_u32 v{vT+1}, v{vT}, s9")
e(f"v_and_b32 v{vT+4}, 7, v{vN}")
e(f"v_lshl_add_u32 v{vT+1}, v{vT+4}, 4, v{vT+1}")
for t in range(20):
    e(f"s_mov_b32 s6, {t*8*3456}")
    e(f"buffer_load_dwordx4 v[{48+4*t}:{48+4*t+3}], v{vT+1}, s[{sW1}:{sW1+3}], s6 offen{NTW}")
e("s_lshl_b32 s8, s7, 7")
e(f"v_lshlrev_b32 v{vT+1}, 1, v{vLANE}")
e(f"v_add_u32 v{vT+1}, s8, v{vT+1}")
e(f"global_load_ushort v{vB1}, v{vT+1}, s[30:31]")
e(f"v_lshlrev_b32 v{vT+1}, 4, v{vLANE}")
e("s_mul_i32 s8, s14, 20480")
for t in range(20):
    e(f"s_add_u32 s9, s8, {t*1024}")
    e(f"s_add_u32 s10, s9, {L_BIG}")
    e("s_mov_b32 m0, s10")
    e("s_nop 0")
    e(f"buffer_load_dwordx4 v{vT+1}, s[{sW2}:{sW2+3}], s9 offen{NTW} lds")
e(f"v_lshlrev_b32 v{vT}, 2, v{vT}")
F = [16, 20, 24, vA + 4]
e("s_lshl_b32 s8, s14, 11")
e(f"s_add_u32 s8, s8, {L_HP}")
e(f"v_lshlrev_b32 v{vT+11}, 5, v{vN}")
e(f"v_add_u32 v{vT+11}, s8, v{vT+11}")
e(f"v_and_b32 v{vT+1}, 1, v{vG}")
e(f"v_lshl_add_u32 v{vT+11}, v{vT+1}, 4, v{vT+11}")
e(f"v_lshrrev_b32 v{vT+1}, 1, v{vG}")
e(f"v_lshl_add_u32 v{vT+11}, v{vT+1}, 9, v{vT+11}")
e("s_waitcnt vmcnt(21)")
for p in range(2):
    for a in F:
        for r in range(4):
            e(f"v_mov_b32 v{a+r}, 0")
    for k in range(4):
        bb = 4 * p + k
        for half in range(2):
            for t in range(10):
                e(f"ds_read_b32 v{vT+1+t}, v{vT} offset:{L_XN + bb*2560 + (half*10+t)*32}")
            for t in range(10):
                e(f"s_waitcnt lgkmcnt({9-t})")
                for r in range(4):
                    e(f"v_and_b32 v{vA+r}, v{vT+1+t}, v{vM8+r}")
                e("s_nop 1")
                w = 48 + 4 * (half * 10 + t)
                e(f"v_mfma_f32_16x16x32_bf16 v[{F[k]}:{F[k]+3}], v[{vA}:{vA+3}], v[{w}:{w+3}], v[{F[k]}:{F[k]+3}]")
    e("s_nop 7")
    for k in range(2):
        for r in range(4):
            e(f"v_permlane32_swap_b32 v{F[k]+r}, v{F[k+2]+r}")
    e("s_nop 1")
    for k in range(2):
        for r in range(4):
            e(f"v_add_f32_dpp v{F[k]+r}, v{F[k+2]+r}, v{F[k]+r} row_ror:8 row_mask:0xf bank_mask:0xf")
    e("s_mov_b32 exec_lo, 0x00ff00ff")
    e("s_mov_b32 exec_hi, 0x00ff00ff")
    for k in range(2):
        e(f"ds_write_b128 v{vT+11}, v[{F[k]}:{F[k]+3}] offset:{(4*p+k)*256}")
    e("s_mov_b64 exec, -1")
    e("s_nop 1")
e("s_waitcnt vmcnt(0) lgkmcnt(0)")
e(f"v_mov_b32 v{vT}, 0")
e(f"v_mov_b32 v{vT+1}, 1")
e("s_mov_b64 exec, 1")
e(f"ds_add_u32 v{vT}, v{vT+1} offset:{L_FSYNC}")
e("s_mov_b64 exec, -1")
e("s_mov_b32 s6, 0")
lab("L_fspin")
e(f"ds_read_b32 v{vT+2}, v{vT} offset:{L_FSYNC}")
e("s_waitcnt lgkmcnt(0)")
e(f"v_readfirstlane_b32 s8, v{vT+2}")
e("s_add_u32 s6, s6, 1")
e("s_cmp_ge_u32 s8, 4")
e("s_cbranch_scc1 L_fspin_done")
e("s_sleep 2")
e("s_cmp_lt_u32 s6, 0x100000")
e("s_cbranch_scc1 L_fspin")
lab("L_fspin_done")
e("s_lshl_b32 s8, s14, 9")
e(f"v_lshlrev_b32 v{vT}, 2, v{vLANE}")
e(f"v_add_u32 v{vT}, s8, v{vT}")
e(f"v_add_u32 v{vT+6}, {L_HP}, v{vT}")
e(f"v_lshlrev_b32 v{vT+2}, 16, v{vB1}")
for k in range(2):
    for j in range(4):
        e(f"ds_read_b32 v{vA+j}, v{vT+6} offset:{j*2048 + k*256}")
    e("s_waitcnt lgkmcnt(0)")
    e(f"v_add_f32 v{vT+3}, v{vA}, v{vA+1}")
    e(f"v_add_f32 v{vT+3}, v{vT+3}, v{vA+2}")
    e(f"v_add_f32 v{vT+3}, v{vT+3}, v{vA+3}")
    bf16r(vT + 3, vT + 3)
    e(f"v_add_f32 v{vT+3}, v{vT+3}, v{vT+2}")
    bf16r(vT + 3, vT + 3)
    e(f"v_mul_f32 v{vT+4}, v{vT+3}, v{vT+3}")
    e(f"v_mul_f32 v{vT+4}, v{vT+4}, v{vT+3}")
    e(f"v_mov_b32 v{vT+5}, {f32(0.044715)}")
    e(f"v_fma_f32 v{vT+4}, v{vT+4}, v{vT+5}, v{vT+3}")
    e(f"v_mul_f32 v{vT+4}, {f32(-2.0*0.7978845608028654*1.4426950408889634)}, v{vT+4}")
    e(f"v_exp_f32 v{vT+4}, v{vT+4}")
    e("s_nop 0")
    e(f"v_add_f32 v{vT+4}, 1.0, v{vT+4}")
    e(f"v_rcp_f32 v{vT+4}, v{vT+4}")
    e("s_nop 0")
    e(f"v_mul_f32 v{vT+3}, v{vT+3}, v{vT+4}")
    e(f"v_cvt_pk_bf16_f32 v{vT+3}, v{vT+3}, v{vT+3}")
    e(f"ds_write_b32 v{vT}, v{vT+3} offset:{L_H + k*256}")
e("s_waitcnt lgkmcnt(0)")
e("s_lshl_b32 s8, s14, 7")
e(f"v_lshrrev_b32 v{vT}, 3, v{vN}")
e(f"v_lshlrev_b32 v{vT}, 6, v{vT}")
e(f"v_add_u32 v{vT}, s8, v{vT}")
e(f"v_add_u32 v{vT}, v{vT}, v{vG}")
e(f"v_lshlrev_b32 v{vT}, 2, v{vT}")
for i in range(16):
    e(f"ds_read_b32 v{108+i}, v{vT} offset:{L_H + i*16}")
e("s_movk_i32 s9, 1280")
e(f"v_mul_lo_u32 v{vT+1}, v{vG}, s9")
e(f"v_lshl_add_u32 v{vT+1}, v{vN}, 4, v{vT+1}")
e(f"v_add_u32 v{vT+1}, {L_BIG}, v{vT+1}")
e(f"v_add_u32 v{vT+2}, {8*5120}, v{vT+1}")
for k in range(20):
    e(f"v_mov_b32 v{48+k}, 0")
def w2read(i):
    base = 68 + 20 * (i % 2)
    ad, ii = (vT + 1, i) if i < 8 else (vT + 2, i - 8)
    for blk in range(5):
        e(f"ds_read_b128 v[{base+4*blk}:{base+4*blk+3}], v{ad} offset:{ii*5120 + blk*256}")
w2read(0)
for i in range(16):
    base = 68 + 20 * (i % 2)
    if i < 15:
        w2read(i + 1)
        e("s_waitcnt lgkmcnt(5)")
    else:
        e("s_waitcnt lgkmcnt(0)")
    for r in range(4):
        e(f"v_and_b32 v{vA+r}, v{108+i}, v{vM8+r}")
    e("s_nop 1")
    for blk in range(5):
        e(f"v_mfma_f32_16x16x32_bf16 v[{48+4*blk}:{48+4*blk+3}], v[{vA}:{vA+3}], v[{base+4*blk}:{base+4*blk+3}], v[{48+4*blk}:{48+4*blk+3}]")
    e("s_nop 7")
e(f"v_lshrrev_b32 v{vT}, 1, v{vG}")
e("s_lshl_b32 s8, s14, 1")
e(f"v_add_u32 v{vT}, s8, v{vT}")
e(f"s_mov_b32 s9, {WS_BATCH}")
e(f"v_mul_lo_u32 v{vT}, v{vT}, s9")
e("s_add_u32 s8, s7, 32")
e("s_mul_i32 s8, s8, 2560")
e(f"v_add_u32 v{vT}, s8, v{vT}")
e(f"v_lshl_add_u32 v{vT}, v{vN}, 5, v{vT}")
e(f"v_and_b32 v{vT+1}, 1, v{vG}")
e(f"v_lshl_add_u32 v{vT}, v{vT+1}, 4, v{vT}")
for blk in range(5):
    e(f"global_store_dwordx4 v{vT}, v[{48+4*blk}:{48+4*blk+3}], s[40:41] offset:{blk*512} sc1")
e("s_waitcnt vmcnt(0)")
e("s_mov_b64 exec, 3")
e("s_lshl_b32 s8, s14, 1")
e(f"v_add_u32 v{vT}, s8, v{vLANE}")
e(f"v_lshlrev_b32 v{vT+3}, 2, v{vT}")
e(f"v_mov_b32 v{vT+1}, 1")
e(f"global_atomic_add v{vT+2}, v{vT+3}, v{vT+1}, s[38:39] sc0")
e("s_waitcnt vmcnt(0)")
e(f"v_lshlrev_b32 v{vT+1}, v{vT}, v{vT+1}")
e(f"v_cmp_eq_u32 vcc, 58, v{vT+2}")
e("s_nop 1")
e(f"v_cndmask_b32 v{vT+1}, 0, v{vT+1}, vcc")
e(f"v_mov_b32 v{vT}, 0")
e(f"ds_or_b32 v{vT}, v{vT+1} offset:{L_FLAG}")
e("s_mov_b64 exec, -1")
e("s_setprio 0")
e("s_mov_b32 s13, 16")
e(f"v_lshlrev_b32 v{vT}, 4, v{vN}")
e(f"ds_read_b128 v[{vQ}:{vQ+3}], v{vT} offset:{L_QB}")
e("s_branch L_kinit")
lab("L_mid0")
e("s_mov_b32 s12, 0")
e("s_branch L_mid")
lab("L_mid1")
e("s_mov_b32 s12, 1")
lab("L_mid")
stamp(3)
wave_allreduce("v_max_f32", vMx)
e("s_lshl_b32 s8, s3, 2")
e(f"v_mov_b32 v{vT}, s8")
e("s_mov_b64 exec, 1")
e(f"ds_write_b32 v{vT}, v{vMx} offset:{L_ML}")
e("s_mov_b64 exec, -1")
e("s_waitcnt lgkmcnt(0)")
e("s_barrier")
for k in range(4):
    e(f"ds_read_b128 v[{vA+4*(k%2)}:{vA+4*(k%2)+3}], v{vZero} offset:{L_ML+16*k}")
    if k % 2 == 1:
        e("s_waitcnt lgkmcnt(0)")
        for j in range(0, 8, 2):
            e(f"v_max3_f32 v{vMx}, v{vMx}, v{vA+j}, v{vA+j+1}")

if not OPT['woearly']: wo_loads()
e("s_cmp_eq_u32 s12, 1")
e("s_cbranch_scc1 L_v1")

def v_step(st):
    lab(f"L_v{st}")
    e(f"s_cmp_ge_u32 s{sA[st]}, 512")
    e("s_cbranch_scc1 L_vdone")
    e(f"s_sub_u32 s8, s{sA[st]}, 256")
    e("s_lshl_b32 s8, s8, 6")
    e(f"v_add_u32 v{vT}, s8, v{vSbV}")
    e(f"ds_read_b32 v{vP}, v{vT}")
    e("s_waitcnt lgkmcnt(0)")
    e(f"v_readfirstlane_b32 s{sA[st]}, v{vNext}")
    e(f"v_sub_f32 v{vP}, v{vP}, v{vMx}")
    e(f"v_exp_f32 v{vP}, v{vP}")
    e("s_nop 0")
    e(f"v_add_f32 v{vL}, v{vL}, v{vP}")
    e(f"v_cvt_pk_bf16_f32 v{vP}, v{vP}, v{vP}")
    e(f"s_cmp_lt_u32 s{sA[1-st]}, 512")
    e(f"s_cbranch_scc1 L_vw{st}")
    e("s_waitcnt vmcnt(0)")
    lab(f"L_vw{st}")
    e("s_waitcnt vmcnt(4)")
    e("s_nop 0")
    for i in range(4):
        a = vA + 4 * (i % 2)
        for r in range(4):
            e(f"v_and_b32_dpp v{a+r}, v{vP}, v{vM+r} row_newbcast:{i} row_mask:0xf bank_mask:0xf")
        if i % 2 == 1:
            e("s_nop 0")
            for u in range(2):
                aa = vA + 4 * u
                r0 = vRING + 16 * st + 4 * (i - 1 + u)
                e(f"v_mfma_f32_16x16x32_bf16 v[{vO}:{vO+3}], v[{aa}:{aa+3}], v[{r0}:{r0+3}], v[{vO}:{vO+3}]")
    issue_group(st, sA[st])
    grab()

v_step(0)
v_step(1)
e("s_branch L_v0")
lab("L_vdone")
wave_allreduce("v_add_f32", vL)
e(f"v_mul_f32 v{vL}, 0.25, v{vL}") if False else e(f"v_mul_f32 v{vL}, {f32(0.25)}, v{vL}")

stamp(4)
e(f"v_lshlrev_b32 v{vT+2}, 5, v{vN}")
e(f"v_lshl_add_u32 v{vT+2}, v{vG}, 4, v{vT+2}")
e("s_lshl_b32 s8, s3, 9")
e(f"v_add_u32 v{vT+2}, s8, v{vT+2}")
e("s_lshl_b32 s8, s3, 2")
e(f"v_mov_b32 v{vT+3}, s8")
e("s_nop 7")
e("s_mov_b32 exec_hi, 0")
e(f"ds_write_b128 v{vT+2}, v[{vO}:{vO+3}] offset:{L_QP}")
e("s_mov_b64 exec, 1")
e(f"ds_write_b32 v{vT+3}, v{vL} offset:{L_ML+64}")
e("s_mov_b64 exec, -1")
e("s_waitcnt lgkmcnt(0)")
e("s_barrier")
e("s_cmp_ge_u32 s3, 2")
e("s_cbranch_scc1 L_c_skip")
for k in range(4):
    e(f"ds_read_b128 v[{vRING+4*k}:{vRING+4*k+3}], v{vZero} offset:{L_ML+64+16*k}")
e(f"v_lshlrev_b32 v{vT}, 2, v0")
for k in range(16):
    e(f"ds_read_b32 v{vRING+16+k}, v{vT} offset:{L_QP+k*512}")
e("s_waitcnt lgkmcnt(0)")
for k in range(1, 16):
    e(f"v_add_f32 v{vRING}, v{vRING}, v{vRING+k}")
    e(f"v_add_f32 v{vRING+16}, v{vRING+16}, v{vRING+16+k}")
e(f"v_rcp_f32 v{vT+4}, v{vRING}")
e("s_nop 0")
e(f"v_mul_f32 v{vT+5}, v{vRING+16}, v{vT+4}")
e(f"v_fma_f32 v{vT+3}, -v{vT+5}, v{vRING}, v{vRING+16}")
e(f"v_fma_f32 v{vT+3}, v{vT+3}, v{vT+4}, v{vT+5}")
e(f"v_cvt_pk_bf16_f32 v{vT+3}, v{vT+3}, v{vT+3}")
e(f"ds_write_b32 v{vT}, v{vT+3} offset:{L_OB}")
e("s_waitcnt lgkmcnt(0)")
lab("L_c_skip")
e("s_barrier")

e("s_lshl_b32 s8, s3, 3")
e(f"v_add_u32 v{vT}, s8, v{vG}")
e(f"v_lshlrev_b32 v{vT}, 2, v{vT}")
e(f"ds_read_b32 v{vT+1}, v{vT} offset:{L_OB}")
e(f"ds_read_b32 v{vT+2}, v{vT} offset:{L_OB+16}")
for k in range(20):
    e(f"v_mov_b32 v{vPACC+k}, 0")
e("s_waitcnt lgkmcnt(0)")
for i in range(2):
    a = vA + 4 * i
    for r in range(4):
        e(f"v_and_b32 v{a+r}, v{vT+1+i}, v{vM+r}")
e("s_waitcnt vmcnt(0)")
e("s_nop 0")
for i in range(2):
    a = vA + 4 * i
    for blk in range(5):
        k = i * 5 + blk
        e(f"v_mfma_f32_16x16x32_bf16 v[{vPACC+4*blk}:{vPACC+4*blk+3}], v[{a}:{a+3}], v[{vW+4*k}:{vW+4*k+3}], v[{vPACC+4*blk}:{vPACC+4*blk+3}]")
e(f"v_lshlrev_b32 v{vT+2}, 5, v{vN}")
e(f"v_lshl_add_u32 v{vT+2}, v{vG}, 4, v{vT+2}")
e("s_mul_i32 s8, s3, 2560")
e(f"v_add_u32 v{vT+2}, s8, v{vT+2}")
e("s_nop 7")
e("s_mov_b32 exec_hi, 0")
for blk in range(5):
    e(f"ds_write_b128 v{vT+2}, v[{vPACC+4*blk}:{vPACC+4*blk+3}] offset:{L_BIG+blk*512}")
e("s_mov_b64 exec, -1")
e("s_waitcnt lgkmcnt(0)")
e("s_barrier")
e("s_cmp_ge_u32 s3, 3")
e("s_cbranch_scc1 L_s_skip")
e("v_cmp_gt_u32 vcc, 160, v0")
e("s_and_saveexec_b64 s[12:13], vcc")
e("s_cbranch_execz L_s_skip2")
e(f"v_lshlrev_b32 v{vT}, 4, v0")
e(f"v_add_u32 v{vT+1}, {L_BIG}, v{vT}")
for k in range(16):
    e(f"ds_read_b128 v[{vRING+4*k}:{vRING+4*k+3}], v{vT+1} offset:{k*2560}")
e(f"s_mul_i32 s8, s4, {WS_BATCH}")
e("s_mul_i32 s9, s5, 2560")
e("s_add_u32 s8, s8, s9")
e(f"v_add_u32 v{vT}, s8, v{vT}")
e("s_waitcnt lgkmcnt(0)")
for k in range(1, 16):
    for r in range(4):
        e(f"v_add_f32 v{vRING+r}, v{vRING+r}, v{vRING+4*k+r}")
e(f"global_store_dwordx4 v{vT}, v[{vRING}:{vRING+3}], s[40:41] sc1")
e("s_waitcnt vmcnt(0)")
lab("L_s_skip2")
e("s_mov_b64 exec, s[12:13]")
lab("L_s_skip")
e("s_barrier")
e("s_cmp_lg_u32 s3, 0")
e("s_cbranch_scc1 L_sig_done")
e("s_mov_b64 exec, 1")
stamp(5)
e("s_lshl_b32 s8, s4, 2")
e(f"v_mov_b32 v{vT}, s8")
e(f"v_mov_b32 v{vT+1}, 1")
e(f"global_atomic_add v{vT+2}, v{vT}, v{vT+1}, s[38:39] sc0")
e("s_waitcnt vmcnt(0)")
e(f"v_readfirstlane_b32 s8, v{vT+2}")
e("s_lshl_b32 s9, 1, s4")
e("s_cmp_eq_u32 s8, 58")
e("s_cselect_b32 s9, s9, 0")
e(f"v_mov_b32 v{vT}, 0")
e(f"v_mov_b32 v{vT+1}, s9")
e(f"ds_or_b32 v{vT}, v{vT+1} offset:{L_FLAG}")
e("s_waitcnt lgkmcnt(0)")
e("s_mov_b64 exec, -1")
lab("L_sig_done")
e("s_barrier")
e(f"v_mov_b32 v{vT}, 0")
e(f"ds_read_b32 v{vT+1}, v{vT} offset:{L_FLAG}")
e("s_waitcnt lgkmcnt(0)")
e(f"v_readfirstlane_b32 s7, v{vT+1}")
e("s_cmp_eq_u32 s7, 0")
e("s_cbranch_scc1 L_end2")

lab("L_fin_loop")
e("s_ff1_i32_b32 s14, s7")
e("s_lshl_b32 s8, 1, s14")
e("s_xor_b32 s7, s7, s8")
e(f"s_mul_i32 s8, s14, {WS_BATCH}")
e("s_add_u32 s10, s40, s8")
e("s_addc_u32 s11, s41, 0")
srd(sWS, 10, 11, WS_BATCH)
e(f"v_mul_u32_u24 v{vT}, 52429, v0")
e(f"v_lshrrev_b32 v{vT}, 23, v{vT}")
e(f"v_mul_u32_u24 v{vT+1}, 160, v{vT}")
e(f"v_sub_u32 v{vT+1}, v0, v{vT+1}")
e(f"v_lshlrev_b32 v{vT+1}, 4, v{vT+1}")
e("s_movk_i32 s9, 2560")
e(f"v_mul_lo_u32 v{vT+2}, v{vT}, s9")
e(f"v_add_u32 v{vT+2}, v{vT+2}, v{vT+1}")
e("v_cmp_gt_u32 vcc, 960, v0")
e("s_and_saveexec_b64 s[12:13], vcc")
e("s_cbranch_execz L_fin_a")
for j in range(10):
    e(f"s_mov_b32 s6, {j*6*2560}")
    e(f"buffer_load_dwordx4 v[{vRING+4*j}:{vRING+4*j+3}], v{vT+2}, s[{sWS}:{sWS+3}], s6 offen sc1")
e(f"v_cmp_gt_u32 vcc, 2, v{vT}")
e("s_waitcnt vmcnt(0)")
S4, Z4 = vRING, vRING + 24
for j in range(1, 5):
    for r in range(4):
        e(f"v_add_f32 v{S4+r}, v{S4+r}, v{vRING+4*j+r}")
for j in range(7, 10):
    for r in range(4):
        e(f"v_add_f32 v{Z4+r}, v{Z4+r}, v{vRING+4*j+r}")
for r in range(4):
    e(f"v_cndmask_b32 v{vT+4}, 0, v{vRING+20+r}, vcc")
    e(f"v_cndmask_b32 v{vT+5}, v{vRING+20+r}, 0, vcc")
    e(f"v_add_f32 v{S4+r}, v{S4+r}, v{vT+4}")
    e(f"v_add_f32 v{Z4+r}, v{Z4+r}, v{vT+5}")
e("s_movk_i32 s9, 5120")
e(f"v_mul_lo_u32 v{vT+2}, v{vT}, s9")
e(f"v_add_u32 v{vT+2}, v{vT+2}, v{vT+1}")
e(f"ds_write_b128 v{vT+2}, v[{S4}:{S4+3}] offset:{L_BIG}")
e(f"ds_write_b128 v{vT+2}, v[{Z4}:{Z4+3}] offset:{L_BIG+2560}")
e("s_waitcnt lgkmcnt(0)")
lab("L_fin_a")
e("s_mov_b64 exec, s[12:13]")
e("s_barrier")
e("v_cmp_gt_u32 vcc, 640, v0")
e("s_and_saveexec_b64 s[12:13], vcc")
e("s_cbranch_execz L_fin_b")
e(f"v_lshlrev_b32 v{vT}, 2, v0")
for k in range(6):
    e(f"ds_read_b32 v{vRING+k}, v{vT} offset:{L_BIG+k*5120}")
    e(f"ds_read_b32 v{vRING+8+k}, v{vT} offset:{L_BIG+k*5120+2560}")
e(f"v_lshlrev_b32 v{vT+1}, 1, v0")
e(f"global_load_ushort v{vT+2}, v{vT+1}, s[34:35]")
e("s_mul_i32 s8, s14, 1280")
e(f"v_add_u32 v{vT+1}, s8, v{vT+1}")
e(f"global_load_ushort v{vT+3}, v{vT+1}, s[16:17]")
e("s_waitcnt lgkmcnt(0)")
for k in range(1, 6):
    e(f"v_add_f32 v{vRING}, v{vRING}, v{vRING+k}")
    e(f"v_add_f32 v{vRING+8}, v{vRING+8}, v{vRING+8+k}")
bf16r(vRING, vRING)
bf16r(vRING + 8, vRING + 8)
e("s_waitcnt vmcnt(0)")
e(f"v_lshlrev_b32 v{vT+2}, 16, v{vT+2}")
e(f"v_lshlrev_b32 v{vT+3}, 16, v{vT+3}")
e(f"v_add_f32 v{vRING+8}, v{vRING+8}, v{vT+2}")
bf16r(vRING + 8, vRING + 8)
e(f"v_mul_f32 v{vT+4}, {f32(-1.4426950408889634)}, v{vRING+8}")
e(f"v_exp_f32 v{vT+4}, v{vT+4}")
e("s_nop 0")
e(f"v_add_f32 v{vT+4}, 1.0, v{vT+4}")
e(f"v_rcp_f32 v{vT+4}, v{vT+4}")
e("s_nop 0")
e(f"v_mul_f32 v{vRING+8}, v{vRING+8}, v{vT+4}")
bf16r(vRING + 8, vRING + 8)
e(f"v_mul_f32 v{vRING}, v{vRING}, v{vRING+8}")
bf16r(vRING, vRING)
e(f"v_add_f32 v{vRING}, v{vRING}, v{vT+3}")
e(f"v_cvt_pk_bf16_f32 v{vRING}, v{vRING}, v{vRING}")
e(f"global_store_short v{vT+1}, v{vRING}, s[36:37]")
e("s_waitcnt vmcnt(0)")
lab("L_fin_b")
e("s_mov_b64 exec, s[12:13]")
e("s_barrier")
e("s_cmp_lg_u32 s7, 0")
e("s_cbranch_scc1 L_fin_loop")
lab("L_end2")
if OPT["stamps"]:
    stamp(6)
    e("s_cmp_lg_u32 s3, 0")
    e("s_cbranch_scc1 L_end")
    e("s_mov_b64 exec, 1")
    e("s_lshl_b32 s8, s2, 6")
    e(f"s_add_u32 s8, s8, {32<<20}")
    e(f"v_mov_b32 v{vT}, s8")
    for j in range(7):
        e(f"v_mov_b32 v{vT+2}, s{86+2*j}")
        e(f"v_mov_b32 v{vT+3}, s{87+2*j}")
        e(f"global_store_dwordx2 v{vT}, v[{vT+2}:{vT+3}], s[40:41] offset:{8*j}")
        e("s_nop 1")
lab("L_end")
e("s_endpgm")

out += "\n".join(lines) + "\n"
out += f""".section .rodata,"a"
.p2align 6
.amdhsa_kernel {NAME}_kernel
  .amdhsa_next_free_vgpr 128
  .amdhsa_next_free_sgpr 102
  .amdhsa_accum_offset 128
  .amdhsa_group_segment_fixed_size 0
  .amdhsa_kernarg_size 104
  .amdhsa_user_sgpr_count 2
  .amdhsa_user_sgpr_kernarg_segment_ptr 1
  .amdhsa_system_sgpr_workgroup_id_x 1
.end_amdhsa_kernel
"""
open(sys.argv[1], "w").write(out)
```

```python
import sys, struct

NAME = "recurrent_scan__mha_block_cached__dense_activation_gelu__decode"

def f32(x):
    return "0x%08x" % struct.unpack("<I", struct.pack("<f", x))[0]

LOG2E = f32(1.4426950408889634)
SCALE = f32(128 ** -0.5)
INV640 = f32(1.0 / 640)
EPS = f32(1e-5)

OPT = dict(ring=8, nt=1, interleave=0, stamps=0, map=0, nw=16, nowq=0, nowo=0, noffn=0, ntw=1, sc1w=0, ffnst=0, fpar=0, rot=0, nwe=4, ldspre=1, woearly=0, nwo=16, kvsc=0)
for a in sys.argv[2:]:
    k, v = a.split("=")
    OPT[k] = int(v)
R = OPT["ring"]
NT = (" sc0" if OPT["kvsc"] & 1 else "") + (" sc1" if OPT["kvsc"] & 2 else "") + (" nt" if OPT["nt"] else "")
NTW = (" nt" if OPT["ntw"] else "") + (" sc1" if OPT["sc1w"] else "")

L_XN = 0
L_QP = 20480
L_QB = 28672
L_ML = 28928
L_FLAG = 29056
L_OB = 29184
L_H = 30720
L_BIG = 32768
L_HP = 32768 + 81920
L_S = 32768 + 81920 + 32768
L_CNT = 29060
L_FSYNC = 29064
LDS_BYTES = 163840

WS_BATCH = 59 * 2560

lines = []
def e(s):
    lines.append("    " + s)
def lab(s):
    lines.append(s + ":")
def c(s):
    lines.append("    ; " + s)

sK, sV, sX, sWQ, sWO, sW1, sW2, sWS = 44, 48, 52, 56, 60, 64, 68, 72

def srd(s, lo, hi, nrec):
    e(f"s_mov_b32 s{s}, s{lo}")
    e(f"s_and_b32 s{s+1}, s{hi}, 0xffff")
    e(f"s_mov_b32 s{s+2}, {nrec}")
    e(f"s_mov_b32 s{s+3}, 0x00020000")

vLANE, vG, vN = 1, 2, 3
vM = 4
vM8 = 8
vKV = 12
vB1 = 13
vQ = 16
vS = 20
vO = 24
vA = 28
vT = 36
vRING = 48
vW = 80
vACC = vW + 40
vPACC = vRING

def bf16r(dst, src, tmp=None):
    e(f"v_cvt_pk_bf16_f32 v{dst}, v{src}, v{src}")
    e(f"v_and_b32 v{dst}, 0xffff0000, v{dst}")

def row_allreduce(op, v, t):
    for sh in (8, 4, 2, 1):
        e("s_nop 1")
        e(f"{op}_dpp v{v}, v{v}, v{v} row_ror:{sh} row_mask:0xf bank_mask:0xf")

def wave_allreduce(op, v):
    row_allreduce(op, v, None)
    e("s_nop 1")
    e(f"v_readlane_b32 s8, v{v}, 0")
    e(f"v_readlane_b32 s9, v{v}, 16")
    e(f"v_readlane_b32 s10, v{v}, 32")
    e(f"v_readlane_b32 s11, v{v}, 48")
    e("s_nop 1")
    e(f"v_mov_b32 v{v}, s8")
    e(f"{op} v{v}, s9, v{v}")
    e(f"{op} v{v}, s10, v{v}")
    e(f"{op} v{v}, s11, v{v}")

def stamp(j):
    if OPT["stamps"]:
        e(f"s_memrealtime s[{86+2*j}:{87+2*j}]")
        e("s_waitcnt lgkmcnt(0)")

hdr = open("cdna_kernels/%s.s.ref" % NAME).read().split("; Override launch")[0]
out = hdr
out += f"; @launch grid=(256,1,1) block=(1024,1,1) lds={LDS_BYTES}\n"
out += f""".amdgcn_target "amdgcn-amd-amdhsa--gfx950"
.text
.globl {NAME}_kernel
.p2align 8
.type {NAME}_kernel,@function
{NAME}_kernel:
"""

e("s_cmp_ge_u32 s2, 256")
e("s_cbranch_scc1 L_end")
stamp(0)
e("s_load_dwordx16 s[16:31], s[0:1], 0")
e("s_load_dwordx8 s[32:39], s[0:1], 64")
e("s_load_dwordx2 s[40:41], s[0:1], 96")
e(f"v_and_b32 v{vLANE}, 63, v0")
e("v_lshrrev_b32 v2, 6, v0")
e("s_nop 0")
e("v_readfirstlane_b32 s3, v2")
e(f"v_lshrrev_b32 v{vG}, 4, v{vLANE}")
e(f"v_and_b32 v{vN}, 15, v{vLANE}")
if OPT["map"] == 0:
    e("s_lshr_b32 s4, s2, 5")
    e("s_and_b32 s5, s2, 31")
else:
    e("s_and_b32 s4, s2, 7")
    e("s_lshr_b32 s5, s2, 3")
e("s_lshl_b32 s15, s4, 5")
e("s_add_u32 s15, s15, s5")

e(f"v_and_b32 v{vT}, 7, v{vN}")
e(f"v_mov_b32 v{vT+1}, 0xffff")
e(f"v_mov_b32 v{vT+2}, 0xffff0000")
for r in range(4):
    for (dst, src) in ((vM + r, vN), (vM8 + r, vT)):
        e(f"v_mov_b32 v{dst}, 0")
        e(f"v_cmp_eq_u32 vcc, {2*r}, v{src}")
        e("s_nop 1")
        e(f"v_cndmask_b32 v{dst}, v{dst}, v{vT+1}, vcc")
        e(f"v_cmp_eq_u32 vcc, {2*r+1}, v{src}")
        e("s_nop 1")
        e(f"v_cndmask_b32 v{dst}, v{dst}, v{vT+2}, vcc")
e("s_waitcnt lgkmcnt(0)")
e("s_lshl_b32 s8, s15, 20")
e("s_add_u32 s10, s18, s8")
e("s_addc_u32 s11, s19, 0")
srd(sK, 10, 11, 1 << 20)
e("s_add_u32 s10, s20, s8")
e("s_addc_u32 s11, s21, 0")
srd(sV, 10, 11, 1 << 20)
srd(sX, 16, 17, 10240)
e("s_lshl_b32 s8, s5, 8")
e("s_add_u32 s10, s22, s8")
e("s_addc_u32 s11, s23, 0")
srd(sWQ, 10, 11, 0)
e(f"s_sub_u32 s{sWQ+2}, {640*8192}, s8")
if OPT["nowq"]: e(f"s_mov_b32 s{sWQ+2}, 0")
e("s_mul_i32 s8, s5, 163840")
e("s_add_u32 s10, s24, s8")
e("s_addc_u32 s11, s25, 0")
srd(sWO, 10, 11, 0 if OPT["nowo"] else 163840)

vX = vT + 4
e("s_and_b32 s8, s3, 7")
e("s_mul_i32 s8, s8, 1280")
e(f"v_lshlrev_b32 v{vT}, 4, v{vLANE}")
e(f"v_lshlrev_b32 v{vT+1}, 2, v{vLANE}")
e(f"buffer_load_dwordx4 v[{vX}:{vX+3}], v{vT}, s[{sX}:{sX+3}], s8 offen")
e(f"buffer_load_dword v{vX+4}, v{vT+1}, s[{sX}:{sX+3}], s8 offen offset:1024")
e("s_mul_i32 s8, s3, 40")
e(f"v_add_u32 v{vT+2}, s8, v{vG}")
e(f"v_lshlrev_b32 v{vT+2}, 13, v{vT+2}")
e(f"v_lshl_add_u32 v{vT+2}, v{vN}, 4, v{vT+2}")
for i in range(10):
    e(f"s_mov_b32 s6, {i*32768}")
    e(f"buffer_load_dwordx4 v[{vW+4*i}:{vW+4*i+3}], v{vT+2}, s[{sWQ}:{sWQ+3}], s6 offen{NTW}")
e(f"v_lshlrev_b32 v{vKV}, 4, v{vLANE}")
sA = (42, 43)
sCUR = 76
e("s_lshr_b32 s7, s2, 1")
e("s_and_b32 s8, s2, 1")
e(f"s_cmp_eq_u32 s8, {OPT['fpar']}")
e("s_cselect_b32 s7, s7, 255")
e("s_cmp_lt_u32 s7, 27")
e("s_cselect_b32 s13, 12, 16")
e("s_cselect_b32 s101, 0, 1")
e(f"s_cselect_b32 s98, 0, {OPT['ldspre']}")
e("s_and_b32 s8, s2, 1")
e("s_cmp_eq_u32 s8, 0")
e(f"s_cselect_b32 s8, {OPT['nwe']}, {OPT['nwo']}")
e("s_cmp_eq_u32 s101, 1")
e("s_cselect_b32 s13, s8, s13")
e(f"s_add_u32 s{sA[1]}, s3, s13")
e("s_cmp_lt_u32 s3, s13")
e(f"s_cselect_b32 s{sA[0]}, s3, 1024")
e(f"s_cselect_b32 s{sA[1]}, s{sA[1]}, 1024")
e(f"s_mul_i32 s100, s2, {OPT['rot']}")
e(f"s_mov_b32 s{sCUR+2}, {1<<20}")
e(f"s_mov_b32 s{sCUR+3}, 0x00020000")

igc = [0]
def issue_group(st, sid):
    igc[0] += 1
    e(f"s_cmp_ge_u32 s{sid}, 512")
    e(f"s_cbranch_scc1 L_ig{igc[0]}")
    e(f"s_cmp_lt_u32 s{sid}, 256")
    e(f"s_cselect_b64 s[{sCUR}:{sCUR+1}], s[{sK}:{sK+1}], s[{sV}:{sV+1}]")
    e(f"s_add_u32 s6, s{sid}, s100")
    e("s_and_b32 s6, s6, 255")
    e("s_lshl_b32 s6, s6, 12")
    for i in range(4):
        r = vRING + 16 * st + 4 * i
        e(f"buffer_load_dwordx4 v[{r}:{r+3}], v{vKV}, s[{sCUR}:{sCUR+3}], s6 offen offset:{1024*i}{NT}")
    lab(f"L_ig{igc[0]}")

issue_group(0, sA[0])
issue_group(1, sA[1])
e("s_cmp_lt_u32 s3, s13")
e("s_cselect_b32 s98, s98, 0")
e("s_cmp_eq_u32 s98, 0")
e("s_cbranch_scc1 L_nopre")
e("s_lshl_b32 s99, s13, 1")
e("s_add_u32 s99, s99, s3")
e("s_lshl_b32 s6, s99, 12")
e("s_lshl_b32 s8, s3, 12")
for i in range(4):
    e(f"s_add_u32 s9, s8, {L_BIG + i*1024}")
    e("s_mov_b32 m0, s9")
    e(f"s_add_u32 s10, s6, {i*1024}")
    e(f"buffer_load_dwordx4 v{vKV}, s[{sK}:{sK+3}], s10 offen{NT} lds")
lab("L_nopre")
e(f"v_mov_b32 v{vT+2}, 0")
e("s_cmp_lt_u32 s7, 27")
e(f"s_cselect_b32 s8, 2, {2 + OPT['ldspre']}")
e("s_mul_i32 s8, s8, s13")
e(f"v_mov_b32 v{vT+3}, s8")
e(f"ds_write_b32 v{vT+2}, v{vT+3} offset:{L_CNT}")
e(f"ds_write_b32 v{vT+2}, v{vT+2} offset:{L_FLAG}")
e(f"ds_write_b32 v{vT+2}, v{vT+2} offset:{L_FSYNC}")

e("s_cmp_lt_u32 s3, s13")
e("s_cbranch_scc1 L_w1a")
e("s_waitcnt vmcnt(10)")
lab("L_w1a")
e("s_cmp_eq_u32 s98, 1")
e("s_cbranch_scc1 L_w1b")
e(f"s_waitcnt vmcnt({10+R})")
lab("L_w1b")
e(f"s_waitcnt vmcnt({14+R})")
U = [vA + k for k in range(8)] + [vT + 9, vT + 10]
for k in range(5):
    e(f"v_lshlrev_b32 v{U[2*k]}, 16, v{vX+k}")
    e(f"v_and_b32 v{U[2*k+1]}, 0xffff0000, v{vX+k}")
vSum = vT
e(f"v_add_f32 v{vSum}, v{U[0]}, v{U[1]}")
for k in range(2, 10):
    e(f"v_add_f32 v{vSum}, v{vSum}, v{U[k]}")
wave_allreduce("v_add_f32", vSum)
e(f"v_mul_f32 v{vSum}, {INV640}, v{vSum}")
vVar = vT + 1
vD = vT + 2
e(f"v_sub_f32 v{vD}, v{U[0]}, v{vSum}")
e(f"v_mul_f32 v{vVar}, v{vD}, v{vD}")
for k in range(1, 10):
    e(f"v_sub_f32 v{vD}, v{U[k]}, v{vSum}")
    e(f"v_fmac_f32 v{vVar}, v{vD}, v{vD}")
wave_allreduce("v_add_f32", vVar)
e(f"v_mul_f32 v{vVar}, {INV640}, v{vVar}")
bf16r(vSum, vSum)
bf16r(vVar, vVar)
e(f"v_add_f32 v{vVar}, {EPS}, v{vVar}")
bf16r(vVar, vVar)
e(f"v_sqrt_f32 v{vVar}, v{vVar}")
e("s_nop 0")
bf16r(vVar, vVar)
vRi = vT + 3
e(f"v_rcp_f32 v{vRi}, v{vVar}")
e("s_nop 0")
for k in range(10):
    u = U[k]
    e(f"v_sub_f32 v{u}, v{u}, v{vSum}")
    bf16r(u, u)
    e(f"v_mul_f32 v{vD}, v{u}, v{vRi}")
    e(f"v_fma_f32 v{u}, -v{vD}, v{vVar}, v{u}")
    e(f"v_fma_f32 v{u}, v{u}, v{vRi}, v{vD}")
    e(f"v_cvt_pk_bf16_f32 v{u}, v{u}, v{u}")
e("s_and_b32 s8, s3, 7")
e("s_mul_i32 s8, s8, 2560")
e(f"v_lshlrev_b32 v{vD}, 5, v{vLANE}")
e(f"v_add_u32 v{vD}, s8, v{vD}")
e(f"ds_write_b128 v{vD}, v[{vA}:{vA+3}] offset:{L_XN}")
e(f"ds_write_b128 v{vD}, v[{vA+4}:{vA+7}] offset:{L_XN+16}")
e(f"v_lshlrev_b32 v{vD}, 3, v{vLANE}")
e(f"v_add_u32 v{vD}, s8, v{vD}")
e(f"v_mov_b32 v{vT+6}, v{vT+9}")
e(f"v_mov_b32 v{vT+7}, v{vT+10}")
e(f"ds_write_b64 v{vD}, v[{vT+6}:{vT+7}] offset:{L_XN+2048}")
e("s_waitcnt lgkmcnt(0)")
e("s_barrier")

e("s_mul_i32 s8, s4, 640")
e("s_mul_i32 s9, s3, 40")
e("s_add_u32 s8, s8, s9")
e(f"v_lshl_add_u32 v{vT}, v{vN}, 2, v{vG}")
e(f"v_add_u32 v{vT}, s8, v{vT}")
e(f"v_lshlrev_b32 v{vT}, 2, v{vT}")
e(f"ds_read_b32 v{vT+1}, v{vT} offset:{L_XN}")
for r in range(4):
    e(f"v_mov_b32 v{vO+r}, 0")
e("s_cmp_lt_u32 s3, s13")
e("s_cbranch_scc1 L_w2a")
e("s_waitcnt vmcnt(0)")
lab("L_w2a")
e("s_cmp_eq_u32 s98, 1")
e("s_cbranch_scc1 L_w2b")
e(f"s_waitcnt vmcnt({R})")
lab("L_w2b")
e(f"s_waitcnt vmcnt({R+4}) lgkmcnt(0)")
e("s_nop 1")
for i in range(10):
    a = vA + 4 * (i % 2)
    for r in range(4):
        e(f"v_and_b32_dpp v{a+r}, v{vT+1}, v{vM+r} row_newbcast:{i} row_mask:0xf bank_mask:0xf")
    e("s_nop 1")
    e(f"v_mfma_f32_16x16x32_bf16 v[{vO}:{vO+3}], v[{a}:{a+3}], v[{vW+4*i}:{vW+4*i+3}], v[{vO}:{vO+3}]")
e(f"v_lshlrev_b32 v{vT+2}, 5, v{vN}")
e(f"v_lshl_add_u32 v{vT+2}, v{vG}, 4, v{vT+2}")
e("s_lshl_b32 s8, s3, 9")
e(f"v_add_u32 v{vT+2}, s8, v{vT+2}")
e("s_nop 7")
e("s_mov_b32 exec_hi, 0")
e(f"ds_write_b128 v{vT+2}, v[{vO}:{vO+3}] offset:{L_QP}")
e("s_mov_b64 exec, -1")
e("s_waitcnt lgkmcnt(0)")
e("s_barrier")
e("s_cmp_ge_u32 s3, 2")
e("s_cbranch_scc1 L_q_skip")
e(f"v_lshlrev_b32 v{vT}, 2, v0")
for k in range(16):
    e(f"ds_read_b32 v{vRING+0 if False else vW+k}, v{vT} offset:{L_QP+k*512}")
e("s_waitcnt lgkmcnt(0)")
for k in range(1, 16):
    e(f"v_add_f32 v{vW}, v{vW}, v{vW+k}")
e(f"v_cvt_pk_bf16_f32 v{vW}, v{vW}, v{vW}")
e(f"v_lshlrev_b32 v{vT}, 1, v0")
e(f"ds_write_b16 v{vT}, v{vW} offset:{L_QB}")
e("s_waitcnt lgkmcnt(0)")
lab("L_q_skip")
e("s_barrier")
e(f"v_lshlrev_b32 v{vT}, 4, v{vN}")
e(f"ds_read_b128 v[{vQ}:{vQ+3}], v{vT} offset:{L_QB}")

stamp(1)
stamp(2)
vNext, vSb, vSbV, vOne = 14, 15, vS, vS + 1
vMx, vL, vP = vT + 10, vT + 11, vS + 2
vZero = vS + 3
lab("L_kinit")
e("s_waitcnt lgkmcnt(0)")
for r in range(4):
    e(f"v_mov_b32 v{vO+r}, 0")
e(f"v_mov_b32 v{vOne}, 1")
e(f"v_mov_b32 v{vZero}, 0")
e(f"v_mov_b32 v{vMx}, 0xff800000")
e(f"v_mov_b32 v{vL}, 0")
e(f"v_lshl_add_u32 v{vSb}, v{vN}, 2, v{vG}")
e(f"v_lshlrev_b32 v{vSb}, 2, v{vSb}")
e(f"v_add_u32 v{vSb}, {L_S}, v{vSb}")
e(f"v_and_b32 v{vSbV}, 3, v{vN}")
e(f"v_lshl_add_u32 v{vSbV}, v{vSbV}, 2, v{vG}")
e(f"v_lshlrev_b32 v{vSbV}, 2, v{vSbV}")
e(f"v_add_u32 v{vSbV}, {L_S}, v{vSbV}")
e(f"v_and_b32 v{vT}, 3, v{vN}")
for k in (1, 2, 3):
    e(f"v_cmp_eq_u32 s[{78+2*k}:{79+2*k}], {k}, v{vT}")

def grab():
    e("s_mov_b64 exec, 1")
    e(f"ds_add_rtn_u32 v{vNext}, v{vZero}, v{vOne} offset:{L_CNT}")
    e("s_mov_b64 exec, -1")
e("s_cmp_ge_u32 s3, s13")
e("s_cselect_b32 s8, s101, 0")
e("s_cmp_eq_u32 s8, 1")
e("s_cbranch_scc1 L_mid0")
e("s_cmp_ge_u32 s3, s13")
e("s_cbranch_scc1 L_ffn")
grab()
e(f"s_cmp_lt_u32 s{sA[0]}, 1024")
e("s_cbranch_scc1 L_kpre")
for st in range(2):
    e("s_waitcnt lgkmcnt(0)")
    e(f"v_readfirstlane_b32 s{sA[st]}, v{vNext}")
    e("s_nop 3")
    issue_group(st, sA[st])
    grab()

def wo_loads():
    vWOoff = vT + 9
    e("s_lshl_b32 s8, s3, 3")
    e(f"v_add_u32 v{vWOoff}, s8, v{vG}")
    e("s_movk_i32 s9, 1280")
    e(f"v_mul_lo_u32 v{vWOoff}, v{vWOoff}, s9")
    e(f"v_lshl_add_u32 v{vWOoff}, v{vN}, 4, v{vWOoff}")
    for k in range(10):
        i, blk = divmod(k, 5)
        e(f"s_mov_b32 s6, {i*4*1280 + blk*256}")
        e(f"buffer_load_dwordx4 v[{vW+4*k}:{vW+4*k+3}], v{vWOoff}, s[{sWO}:{sWO+3}], s6 offen{NTW}")

def k_dots(base):
    T = [vT + i for i in range(4)]
    for i in range(4):
        e(f"v_mov_b32 v{T[i]}, 0")
    for k in range(4):
        for i in range(4):
            e(f"v_dot2c_f32_bf16 v{T[i]}, v{base+4*i+k}, v{vQ+k}")

def k_finish():
    T = [vT + i for i in range(4)]
    for sh in (8, 4, 2, 1):
        for i in range(4):
            e(f"v_add_f32_dpp v{T[i]}, v{T[i]}, v{T[i]} row_ror:{sh} row_mask:0xf bank_mask:0xf")
    for k in (1, 2, 3):
        e(f"v_cndmask_b32 v{T[0]}, v{T[0]}, v{T[k]}, s[{78+2*k}:{79+2*k}]")
    bf16r(T[0], T[0])
    e(f"v_mul_f32 v{T[0]}, {SCALE}, v{T[0]}")
    bf16r(T[0], T[0])
    e(f"v_mul_f32 v{T[0]}, {LOG2E}, v{T[0]}")
    e(f"v_max_f32 v{vMx}, v{vMx}, v{T[0]}")
    e("s_mov_b32 exec_lo, 0x000f000f")
    e("s_mov_b32 exec_hi, 0x000f000f")
    e(f"ds_write_b32 v{vT+4}, v{T[0]}")
    e("s_mov_b64 exec, -1")

lab("L_kpre")
e("s_cmp_eq_u32 s98, 0")
e("s_cbranch_scc1 L_kwo")
e("s_mov_b32 s98, 0")
e("s_lshl_b32 s8, s3, 12")
e(f"v_add_u32 v{vT+5}, s8, v{vKV}")
e("s_waitcnt vmcnt(0)")
for i in range(4):
    e(f"ds_read_b128 v[{vW+4*i}:{vW+4*i+3}], v{vT+5} offset:{L_BIG + 1024*i}")
e("s_lshl_b32 s8, s99, 6")
e(f"v_add_u32 v{vT+4}, s8, v{vSb}")
e("s_waitcnt lgkmcnt(0)")
k_dots(vW)
e("s_nop 2")
k_finish()
lab("L_kwo")
if OPT['woearly']: wo_loads()

def k_step(st):
    lab(f"L_k{st}")
    e(f"s_cmp_ge_u32 s{sA[st]}, 256")
    e(f"s_cbranch_scc1 L_mid{st}")
    e("s_waitcnt vmcnt(4)")
    k_dots(vRING + 16 * st)
    e("s_waitcnt lgkmcnt(0)")
    e(f"v_readfirstlane_b32 s9, v{vNext}")
    e(f"s_lshl_b32 s8, s{sA[st]}, 6")
    e(f"v_add_u32 v{vT+4}, s8, v{vSb}")
    e(f"s_mov_b32 s{sA[st]}, s9")
    issue_group(st, sA[st])
    grab()
    k_finish()

k_step(0)
k_step(1)
e("s_branch L_k0")
lab("L_ffn")
e("s_setprio 3")
e("s_sub_u32 s14, s3, 12")
e("s_lshl_b32 s8, s7, 7")
e("s_add_u32 s10, s28, s8")
e("s_addc_u32 s11, s29, 0")
srd(sW1, 10, 11, 0)
e(f"s_sub_u32 s{sW1+2}, {640*3456}, s8")
if OPT["noffn"]: e(f"s_mov_b32 s{sW1+2}, 0")
e("s_mul_i32 s8, s7, 81920")
e("s_add_u32 s10, s32, s8")
e("s_addc_u32 s11, s33, 0")
srd(sW2, 10, 11, 0 if OPT["noffn"] else 81920)
e(f"v_lshrrev_b32 v{vT+3}, 3, v{vN}")
e(f"v_lshl_add_u32 v{vT+3}, v{vG}, 1, v{vT+3}")
e("s_mul_i32 s8, s14, 160")
e(f"v_add_u32 v{vT}, s8, v{vT+3}")
e("s_movk_i32 s9, 3456")
e(f"v_mul_lo_u32 v{vT+1}, v{vT}, s9")
e(f"v_and_b32 v{vT+4}, 7, v{vN}")
e(f"v_lshl_add_u32 v{vT+1}, v{vT+4}, 4, v{vT+1}")
for t in range(20):
    e(f"s_mov_b32 s6, {t*8*3456}")
    e(f"buffer_load_dwordx4 v[{48+4*t}:{48+4*t+3}], v{vT+1}, s[{sW1}:{sW1+3}], s6 offen{NTW}")
e("s_lshl_b32 s8, s7, 7")
e(f"v_lshlrev_b32 v{vT+1}, 1, v{vLANE}")
e(f"v_add_u32 v{vT+1}, s8, v{vT+1}")
e(f"global_load_ushort v{vB1}, v{vT+1}, s[30:31]")
e(f"v_lshlrev_b32 v{vT+1}, 4, v{vLANE}")
e("s_mul_i32 s8, s14, 20480")
for t in range(20):
    e(f"s_add_u32 s9, s8, {t*1024}")
    e(f"s_add_u32 s10, s9, {L_BIG}")
    e("s_mov_b32 m0, s10")
    e("s_nop 0")
    e(f"buffer_load_dwordx4 v{vT+1}, s[{sW2}:{sW2+3}], s9 offen{NTW} lds")
e(f"v_lshlrev_b32 v{vT}, 2, v{vT}")
F = [16, 20, 24, vA + 4]
e("s_lshl_b32 s8, s14, 11")
e(f"s_add_u32 s8, s8, {L_HP}")
e(f"v_lshlrev_b32 v{vT+11}, 5, v{vN}")
e(f"v_add_u32 v{vT+11}, s8, v{vT+11}")
e(f"v_and_b32 v{vT+1}, 1, v{vG}")
e(f"v_lshl_add_u32 v{vT+11}, v{vT+1}, 4, v{vT+11}")
e(f"v_lshrrev_b32 v{vT+1}, 1, v{vG}")
e(f"v_lshl_add_u32 v{vT+11}, v{vT+1}, 9, v{vT+11}")
e("s_waitcnt vmcnt(21)")
for p in range(2):
    for a in F:
        for r in range(4):
            e(f"v_mov_b32 v{a+r}, 0")
    for k in range(4):
        bb = 4 * p + k
        for half in range(2):
            for t in range(10):
                e(f"ds_read_b32 v{vT+1+t}, v{vT} offset:{L_XN + bb*2560 + (half*10+t)*32}")
            for t in range(10):
                e(f"s_waitcnt lgkmcnt({9-t})")
                for r in range(4):
                    e(f"v_and_b32 v{vA+r}, v{vT+1+t}, v{vM8+r}")
                e("s_nop 1")
                w = 48 + 4 * (half * 10 + t)
                e(f"v_mfma_f32_16x16x32_bf16 v[{F[k]}:{F[k]+3}], v[{vA}:{vA+3}], v[{w}:{w+3}], v[{F[k]}:{F[k]+3}]")
    e("s_nop 7")
    for k in range(2):
        for r in range(4):
            e(f"v_permlane32_swap_b32 v{F[k]+r}, v{F[k+2]+r}")
    e("s_nop 1")
    for k in range(2):
        for r in range(4):
            e(f"v_add_f32_dpp v{F[k]+r}, v{F[k+2]+r}, v{F[k]+r} row_ror:8 row_mask:0xf bank_mask:0xf")
    e("s_mov_b32 exec_lo, 0x00ff00ff")
    e("s_mov_b32 exec_hi, 0x00ff00ff")
    for k in range(2):
        e(f"ds_write_b128 v{vT+11}, v[{F[k]}:{F[k]+3}] offset:{(4*p+k)*256}")
    e("s_mov_b64 exec, -1")
    e("s_nop 1")
e("s_waitcnt vmcnt(0) lgkmcnt(0)")
e(f"v_mov_b32 v{vT}, 0")
e(f"v_mov_b32 v{vT+1}, 1")
e("s_mov_b64 exec, 1")
e(f"ds_add_u32 v{vT}, v{vT+1} offset:{L_FSYNC}")
e("s_mov_b64 exec, -1")
e("s_mov_b32 s6, 0")
lab("L_fspin")
e(f"ds_read_b32 v{vT+2}, v{vT} offset:{L_FSYNC}")
e("s_waitcnt lgkmcnt(0)")
e(f"v_readfirstlane_b32 s8, v{vT+2}")
e("s_add_u32 s6, s6, 1")
e("s_cmp_ge_u32 s8, 4")
e("s_cbranch_scc1 L_fspin_done")
e("s_sleep 2")
e("s_cmp_lt_u32 s6, 0x100000")
e("s_cbranch_scc1 L_fspin")
lab("L_fspin_done")
e("s_lshl_b32 s8, s14, 9")
e(f"v_lshlrev_b32 v{vT}, 2, v{vLANE}")
e(f"v_add_u32 v{vT}, s8, v{vT}")
e(f"v_add_u32 v{vT+6}, {L_HP}, v{vT}")
e(f"v_lshlrev_b32 v{vT+2}, 16, v{vB1}")
for k in range(2):
    for j in range(4):
        e(f"ds_read_b32 v{vA+j}, v{vT+6} offset:{j*2048 + k*256}")
    e("s_waitcnt lgkmcnt(0)")
    e(f"v_add_f32 v{vT+3}, v{vA}, v{vA+1}")
    e(f"v_add_f32 v{vT+3}, v{vT+3}, v{vA+2}")
    e(f"v_add_f32 v{vT+3}, v{vT+3}, v{vA+3}")
    bf16r(vT + 3, vT + 3)
    e(f"v_add_f32 v{vT+3}, v{vT+3}, v{vT+2}")
    bf16r(vT + 3, vT + 3)
    e(f"v_mul_f32 v{vT+4}, v{vT+3}, v{vT+3}")
    e(f"v_mul_f32 v{vT+4}, v{vT+4}, v{vT+3}")
    e(f"v_mov_b32 v{vT+5}, {f32(0.044715)}")
    e(f"v_fma_f32 v{vT+4}, v{vT+4}, v{vT+5}, v{vT+3}")
    e(f"v_mul_f32 v{vT+4}, {f32(-2.0*0.7978845608028654*1.4426950408889634)}, v{vT+4}")
    e(f"v_exp_f32 v{vT+4}, v{vT+4}")
    e("s_nop 0")
    e(f"v_add_f32 v{vT+4}, 1.0, v{vT+4}")
    e(f"v_rcp_f32 v{vT+4}, v{vT+4}")
    e("s_nop 0")
    e(f"v_mul_f32 v{vT+3}, v{vT+3}, v{vT+4}")
    e(f"v_cvt_pk_bf16_f32 v{vT+3}, v{vT+3}, v{vT+3}")
    e(f"ds_write_b32 v{vT}, v{vT+3} offset:{L_H + k*256}")
e("s_waitcnt lgkmcnt(0)")
e("s_lshl_b32 s8, s14, 7")
e(f"v_lshrrev_b32 v{vT}, 3, v{vN}")
e(f"v_lshlrev_b32 v{vT}, 6, v{vT}")
e(f"v_add_u32 v{vT}, s8, v{vT}")
e(f"v_add_u32 v{vT}, v{vT}, v{vG}")
e(f"v_lshlrev_b32 v{vT}, 2, v{vT}")
for i in range(16):
    e(f"ds_read_b32 v{108+i}, v{vT} offset:{L_H + i*16}")
e("s_movk_i32 s9, 1280")
e(f"v_mul_lo_u32 v{vT+1}, v{vG}, s9")
e(f"v_lshl_add_u32 v{vT+1}, v{vN}, 4, v{vT+1}")
e(f"v_add_u32 v{vT+1}, {L_BIG}, v{vT+1}")
e(f"v_add_u32 v{vT+2}, {8*5120}, v{vT+1}")
for k in range(20):
    e(f"v_mov_b32 v{48+k}, 0")
def w2read(i):
    base = 68 + 20 * (i % 2)
    ad, ii = (vT + 1, i) if i < 8 else (vT + 2, i - 8)
    for blk in range(5):
        e(f"ds_read_b128 v[{base+4*blk}:{base+4*blk+3}], v{ad} offset:{ii*5120 + blk*256}")
w2read(0)
for i in range(16):
    base = 68 + 20 * (i % 2)
    if i < 15:
        w2read(i + 1)
        e("s_waitcnt lgkmcnt(5)")
    else:
        e("s_waitcnt lgkmcnt(0)")
    for r in range(4):
        e(f"v_and_b32 v{vA+r}, v{108+i}, v{vM8+r}")
    e("s_nop 1")
    for blk in range(5):
        e(f"v_mfma_f32_16x16x32_bf16 v[{48+4*blk}:{48+4*blk+3}], v[{vA}:{vA+3}], v[{base+4*blk}:{base+4*blk+3}], v[{48+4*blk}:{48+4*blk+3}]")
    e("s_nop 7")
e(f"v_lshrrev_b32 v{vT}, 1, v{vG}")
e("s_lshl_b32 s8, s14, 1")
e(f"v_add_u32 v{vT}, s8, v{vT}")
e(f"s_mov_b32 s9, {WS_BATCH}")
e(f"v_mul_lo_u32 v{vT}, v{vT}, s9")
e("s_add_u32 s8, s7, 32")
e("s_mul_i32 s8, s8, 2560")
e(f"v_add_u32 v{vT}, s8, v{vT}")
e(f"v_lshl_add_u32 v{vT}, v{vN}, 5, v{vT}")
e(f"v_and_b32 v{vT+1}, 1, v{vG}")
e(f"v_lshl_add_u32 v{vT}, v{vT+1}, 4, v{vT}")
for blk in range(5):
    e(f"global_store_dwordx4 v{vT}, v[{48+4*blk}:{48+4*blk+3}], s[40:41] offset:{blk*512} sc1")
e("s_waitcnt vmcnt(0)")
e("s_mov_b64 exec, 3")
e("s_lshl_b32 s8, s14, 1")
e(f"v_add_u32 v{vT}, s8, v{vLANE}")
e(f"v_lshlrev_b32 v{vT+3}, 2, v{vT}")
e(f"v_mov_b32 v{vT+1}, 1")
e(f"global_atomic_add v{vT+2}, v{vT+3}, v{vT+1}, s[38:39] sc0")
e("s_waitcnt vmcnt(0)")
e(f"v_lshlrev_b32 v{vT+1}, v{vT}, v{vT+1}")
e(f"v_cmp_eq_u32 vcc, 58, v{vT+2}")
e("s_nop 1")
e(f"v_cndmask_b32 v{vT+1}, 0, v{vT+1}, vcc")
e(f"v_mov_b32 v{vT}, 0")
e(f"ds_or_b32 v{vT}, v{vT+1} offset:{L_FLAG}")
e("s_mov_b64 exec, -1")
e("s_setprio 0")
e("s_mov_b32 s13, 16")
e(f"v_lshlrev_b32 v{vT}, 4, v{vN}")
e(f"ds_read_b128 v[{vQ}:{vQ+3}], v{vT} offset:{L_QB}")
e("s_branch L_kinit")
lab("L_mid0")
e("s_mov_b32 s12, 0")
e("s_branch L_mid")
lab("L_mid1")
e("s_mov_b32 s12, 1")
lab("L_mid")
stamp(3)
wave_allreduce("v_max_f32", vMx)
e("s_lshl_b32 s8, s3, 2")
e(f"v_mov_b32 v{vT}, s8")
e("s_mov_b64 exec, 1")
e(f"ds_write_b32 v{vT}, v{vMx} offset:{L_ML}")
e("s_mov_b64 exec, -1")
e("s_waitcnt lgkmcnt(0)")
e("s_barrier")
for k in range(4):
    e(f"ds_read_b128 v[{vA+4*(k%2)}:{vA+4*(k%2)+3}], v{vZero} offset:{L_ML+16*k}")
    if k % 2 == 1:
        e("s_waitcnt lgkmcnt(0)")
        for j in range(0, 8, 2):
            e(f"v_max3_f32 v{vMx}, v{vMx}, v{vA+j}, v{vA+j+1}")

if not OPT['woearly']: wo_loads()
e("s_cmp_eq_u32 s12, 1")
e("s_cbranch_scc1 L_v1")

def v_step(st):
    lab(f"L_v{st}")
    e(f"s_cmp_ge_u32 s{sA[st]}, 512")
    e("s_cbranch_scc1 L_vdone")
    e(f"s_sub_u32 s8, s{sA[st]}, 256")
    e("s_lshl_b32 s8, s8, 6")
    e(f"v_add_u32 v{vT}, s8, v{vSbV}")
    e(f"ds_read_b32 v{vP}, v{vT}")
    e("s_waitcnt lgkmcnt(0)")
    e(f"v_readfirstlane_b32 s{sA[st]}, v{vNext}")
    e(f"v_sub_f32 v{vP}, v{vP}, v{vMx}")
    e(f"v_exp_f32 v{vP}, v{vP}")
    e("s_nop 0")
    e(f"v_add_f32 v{vL}, v{vL}, v{vP}")
    e(f"v_cvt_pk_bf16_f32 v{vP}, v{vP}, v{vP}")
    e(f"s_cmp_lt_u32 s{sA[1-st]}, 512")
    e(f"s_cbranch_scc1 L_vw{st}")
    e("s_waitcnt vmcnt(0)")
    lab(f"L_vw{st}")
    e("s_waitcnt vmcnt(4)")
    e("s_nop 0")
    for i in range(4):
        a = vA + 4 * (i % 2)
        for r in range(4):
            e(f"v_and_b32_dpp v{a+r}, v{vP}, v{vM+r} row_newbcast:{i} row_mask:0xf bank_mask:0xf")
        if i % 2 == 1:
            e("s_nop 0")
            for u in range(2):
                aa = vA + 4 * u
                r0 = vRING + 16 * st + 4 * (i - 1 + u)
                e(f"v_mfma_f32_16x16x32_bf16 v[{vO}:{vO+3}], v[{aa}:{aa+3}], v[{r0}:{r0+3}], v[{vO}:{vO+3}]")
    issue_group(st, sA[st])
    grab()

v_step(0)
v_step(1)
e("s_branch L_v0")
lab("L_vdone")
wave_allreduce("v_add_f32", vL)
e(f"v_mul_f32 v{vL}, 0.25, v{vL}") if False else e(f"v_mul_f32 v{vL}, {f32(0.25)}, v{vL}")

stamp(4)
e(f"v_lshlrev_b32 v{vT+2}, 5, v{vN}")
e(f"v_lshl_add_u32 v{vT+2}, v{vG}, 4, v{vT+2}")
e("s_lshl_b32 s8, s3, 9")
e(f"v_add_u32 v{vT+2}, s8, v{vT+2}")
e("s_lshl_b32 s8, s3, 2")
e(f"v_mov_b32 v{vT+3}, s8")
e("s_nop 7")
e("s_mov_b32 exec_hi, 0")
e(f"ds_write_b128 v{vT+2}, v[{vO}:{vO+3}] offset:{L_QP}")
e("s_mov_b64 exec, 1")
e(f"ds_write_b32 v{vT+3}, v{vL} offset:{L_ML+64}")
e("s_mov_b64 exec, -1")
e("s_waitcnt lgkmcnt(0)")
e("s_barrier")
e("s_cmp_ge_u32 s3, 2")
e("s_cbranch_scc1 L_c_skip")
for k in range(4):
    e(f"ds_read_b128 v[{vRING+4*k}:{vRING+4*k+3}], v{vZero} offset:{L_ML+64+16*k}")
e(f"v_lshlrev_b32 v{vT}, 2, v0")
for k in range(16):
    e(f"ds_read_b32 v{vRING+16+k}, v{vT} offset:{L_QP+k*512}")
e("s_waitcnt lgkmcnt(0)")
for k in range(1, 16):
    e(f"v_add_f32 v{vRING}, v{vRING}, v{vRING+k}")
    e(f"v_add_f32 v{vRING+16}, v{vRING+16}, v{vRING+16+k}")
e(f"v_rcp_f32 v{vT+4}, v{vRING}")
e("s_nop 0")
e(f"v_mul_f32 v{vT+5}, v{vRING+16}, v{vT+4}")
e(f"v_fma_f32 v{vT+3}, -v{vT+5}, v{vRING}, v{vRING+16}")
e(f"v_fma_f32 v{vT+3}, v{vT+3}, v{vT+4}, v{vT+5}")
e(f"v_cvt_pk_bf16_f32 v{vT+3}, v{vT+3}, v{vT+3}")
e(f"ds_write_b32 v{vT}, v{vT+3} offset:{L_OB}")
e("s_waitcnt lgkmcnt(0)")
lab("L_c_skip")
e("s_barrier")

e("s_lshl_b32 s8, s3, 3")
e(f"v_add_u32 v{vT}, s8, v{vG}")
e(f"v_lshlrev_b32 v{vT}, 2, v{vT}")
e(f"ds_read_b32 v{vT+1}, v{vT} offset:{L_OB}")
e(f"ds_read_b32 v{vT+2}, v{vT} offset:{L_OB+16}")
for k in range(20):
    e(f"v_mov_b32 v{vPACC+k}, 0")
e("s_waitcnt lgkmcnt(0)")
for i in range(2):
    a = vA + 4 * i
    for r in range(4):
        e(f"v_and_b32 v{a+r}, v{vT+1+i}, v{vM+r}")
e("s_waitcnt vmcnt(0)")
e("s_nop 0")
for i in range(2):
    a = vA + 4 * i
    for blk in range(5):
        k = i * 5 + blk
        e(f"v_mfma_f32_16x16x32_bf16 v[{vPACC+4*blk}:{vPACC+4*blk+3}], v[{a}:{a+3}], v[{vW+4*k}:{vW+4*k+3}], v[{vPACC+4*blk}:{vPACC+4*blk+3}]")
e(f"v_lshlrev_b32 v{vT+2}, 5, v{vN}")
e(f"v_lshl_add_u32 v{vT+2}, v{vG}, 4, v{vT+2}")
e("s_mul_i32 s8, s3, 2560")
e(f"v_add_u32 v{vT+2}, s8, v{vT+2}")
e("s_nop 7")
e("s_mov_b32 exec_hi, 0")
for blk in range(5):
    e(f"ds_write_b128 v{vT+2}, v[{vPACC+4*blk}:{vPACC+4*blk+3}] offset:{L_BIG+blk*512}")
e("s_mov_b64 exec, -1")
e("s_waitcnt lgkmcnt(0)")
e("s_barrier")
e("s_cmp_ge_u32 s3, 3")
e("s_cbranch_scc1 L_s_skip")
e("v_cmp_gt_u32 vcc, 160, v0")
e("s_and_saveexec_b64 s[12:13], vcc")
e("s_cbranch_execz L_s_skip2")
e(f"v_lshlrev_b32 v{vT}, 4, v0")
e(f"v_add_u32 v{vT+1}, {L_BIG}, v{vT}")
for k in range(16):
    e(f"ds_read_b128 v[{vRING+4*k}:{vRING+4*k+3}], v{vT+1} offset:{k*2560}")
e(f"s_mul_i32 s8, s4, {WS_BATCH}")
e("s_mul_i32 s9, s5, 2560")
e("s_add_u32 s8, s8, s9")
e(f"v_add_u32 v{vT}, s8, v{vT}")
e("s_waitcnt lgkmcnt(0)")
for k in range(1, 16):
    for r in range(4):
        e(f"v_add_f32 v{vRING+r}, v{vRING+r}, v{vRING+4*k+r}")
e(f"global_store_dwordx4 v{vT}, v[{vRING}:{vRING+3}], s[40:41] sc1")
e("s_waitcnt vmcnt(0)")
lab("L_s_skip2")
e("s_mov_b64 exec, s[12:13]")
lab("L_s_skip")
e("s_barrier")
e("s_cmp_lg_u32 s3, 0")
e("s_cbranch_scc1 L_sig_done")
e("s_mov_b64 exec, 1")
stamp(5)
e("s_lshl_b32 s8, s4, 2")
e(f"v_mov_b32 v{vT}, s8")
e(f"v_mov_b32 v{vT+1}, 1")
e(f"global_atomic_add v{vT+2}, v{vT}, v{vT+1}, s[38:39] sc0")
e("s_waitcnt vmcnt(0)")
e(f"v_readfirstlane_b32 s8, v{vT+2}")
e("s_lshl_b32 s9, 1, s4")
e("s_cmp_eq_u32 s8, 58")
e("s_cselect_b32 s9, s9, 0")
e(f"v_mov_b32 v{vT}, 0")
e(f"v_mov_b32 v{vT+1}, s9")
e(f"ds_or_b32 v{vT}, v{vT+1} offset:{L_FLAG}")
e("s_waitcnt lgkmcnt(0)")
e("s_mov_b64 exec, -1")
lab("L_sig_done")
e("s_barrier")
e(f"v_mov_b32 v{vT}, 0")
e(f"ds_read_b32 v{vT+1}, v{vT} offset:{L_FLAG}")
e("s_waitcnt lgkmcnt(0)")
e(f"v_readfirstlane_b32 s7, v{vT+1}")
e("s_cmp_eq_u32 s7, 0")
e("s_cbranch_scc1 L_end2")

lab("L_fin_loop")
e("s_ff1_i32_b32 s14, s7")
e("s_lshl_b32 s8, 1, s14")
e("s_xor_b32 s7, s7, s8")
e(f"s_mul_i32 s8, s14, {WS_BATCH}")
e("s_add_u32 s10, s40, s8")
e("s_addc_u32 s11, s41, 0")
srd(sWS, 10, 11, WS_BATCH)
e(f"v_mul_u32_u24 v{vT}, 52429, v0")
e(f"v_lshrrev_b32 v{vT}, 23, v{vT}")
e(f"v_mul_u32_u24 v{vT+1}, 160, v{vT}")
e(f"v_sub_u32 v{vT+1}, v0, v{vT+1}")
e(f"v_lshlrev_b32 v{vT+1}, 4, v{vT+1}")
e("s_movk_i32 s9, 2560")
e(f"v_mul_lo_u32 v{vT+2}, v{vT}, s9")
e(f"v_add_u32 v{vT+2}, v{vT+2}, v{vT+1}")
e("v_cmp_gt_u32 vcc, 960, v0")
e("s_and_saveexec_b64 s[12:13], vcc")
e("s_cbranch_execz L_fin_a")
for j in range(10):
    e(f"s_mov_b32 s6, {j*6*2560}")
    e(f"buffer_load_dwordx4 v[{vRING+4*j}:{vRING+4*j+3}], v{vT+2}, s[{sWS}:{sWS+3}], s6 offen sc1")
e(f"v_cmp_gt_u32 vcc, 2, v{vT}")
e("s_waitcnt vmcnt(0)")
S4, Z4 = vRING, vRING + 24
for j in range(1, 5):
    for r in range(4):
        e(f"v_add_f32 v{S4+r}, v{S4+r}, v{vRING+4*j+r}")
for j in range(7, 10):
    for r in range(4):
        e(f"v_add_f32 v{Z4+r}, v{Z4+r}, v{vRING+4*j+r}")
for r in range(4):
    e(f"v_cndmask_b32 v{vT+4}, 0, v{vRING+20+r}, vcc")
    e(f"v_cndmask_b32 v{vT+5}, v{vRING+20+r}, 0, vcc")
    e(f"v_add_f32 v{S4+r}, v{S4+r}, v{vT+4}")
    e(f"v_add_f32 v{Z4+r}, v{Z4+r}, v{vT+5}")
e("s_movk_i32 s9, 5120")
e(f"v_mul_lo_u32 v{vT+2}, v{vT}, s9")
e(f"v_add_u32 v{vT+2}, v{vT+2}, v{vT+1}")
e(f"ds_write_b128 v{vT+2}, v[{S4}:{S4+3}] offset:{L_BIG}")
e(f"ds_write_b128 v{vT+2}, v[{Z4}:{Z4+3}] offset:{L_BIG+2560}")
e("s_waitcnt lgkmcnt(0)")
lab("L_fin_a")
e("s_mov_b64 exec, s[12:13]")
e("s_barrier")
e("v_cmp_gt_u32 vcc, 640, v0")
e("s_and_saveexec_b64 s[12:13], vcc")
e("s_cbranch_execz L_fin_b")
e(f"v_lshlrev_b32 v{vT}, 2, v0")
for k in range(6):
    e(f"ds_read_b32 v{vRING+k}, v{vT} offset:{L_BIG+k*5120}")
    e(f"ds_read_b32 v{vRING+8+k}, v{vT} offset:{L_BIG+k*5120+2560}")
e(f"v_lshlrev_b32 v{vT+1}, 1, v0")
e(f"global_load_ushort v{vT+2}, v{vT+1}, s[34:35]")
e("s_mul_i32 s8, s14, 1280")
e(f"v_add_u32 v{vT+1}, s8, v{vT+1}")
e(f"global_load_ushort v{vT+3}, v{vT+1}, s[16:17]")
e("s_waitcnt lgkmcnt(0)")
for k in range(1, 6):
    e(f"v_add_f32 v{vRING}, v{vRING}, v{vRING+k}")
    e(f"v_add_f32 v{vRING+8}, v{vRING+8}, v{vRING+8+k}")
bf16r(vRING, vRING)
bf16r(vRING + 8, vRING + 8)
e("s_waitcnt vmcnt(0)")
e(f"v_lshlrev_b32 v{vT+2}, 16, v{vT+2}")
e(f"v_lshlrev_b32 v{vT+3}, 16, v{vT+3}")
e(f"v_add_f32 v{vRING+8}, v{vRING+8}, v{vT+2}")
bf16r(vRING + 8, vRING + 8)
e(f"v_mul_f32 v{vT+4}, {f32(-1.4426950408889634)}, v{vRING+8}")
e(f"v_exp_f32 v{vT+4}, v{vT+4}")
e("s_nop 0")
e(f"v_add_f32 v{vT+4}, 1.0, v{vT+4}")
e(f"v_rcp_f32 v{vT+4}, v{vT+4}")
e("s_nop 0")
e(f"v_mul_f32 v{vRING+8}, v{vRING+8}, v{vT+4}")
bf16r(vRING + 8, vRING + 8)
e(f"v_mul_f32 v{vRING}, v{vRING}, v{vRING+8}")
bf16r(vRING, vRING)
e(f"v_add_f32 v{vRING}, v{vRING}, v{vT+3}")
e(f"v_cvt_pk_bf16_f32 v{vRING}, v{vRING}, v{vRING}")
e(f"global_store_short v{vT+1}, v{vRING}, s[36:37]")
e("s_waitcnt vmcnt(0)")
lab("L_fin_b")
e("s_mov_b64 exec, s[12:13]")
e("s_barrier")
e("s_cmp_lg_u32 s7, 0")
e("s_cbranch_scc1 L_fin_loop")
lab("L_end2")
if OPT["stamps"]:
    stamp(6)
    e("s_cmp_lg_u32 s3, 0")
    e("s_cbranch_scc1 L_end")
    e("s_mov_b64 exec, 1")
    e("s_lshl_b32 s8, s2, 6")
    e(f"s_add_u32 s8, s8, {32<<20}")
    e(f"v_mov_b32 v{vT}, s8")
    for j in range(7):
        e(f"v_mov_b32 v{vT+2}, s{86+2*j}")
        e(f"v_mov_b32 v{vT+3}, s{87+2*j}")
        e(f"global_store_dwordx2 v{vT}, v[{vT+2}:{vT+3}], s[40:41] offset:{8*j}")
        e("s_nop 1")
lab("L_end")
e("s_endpgm")

out += "\n".join(lines) + "\n"
out += f""".section .rodata,"a"
.p2align 6
.amdhsa_kernel {NAME}_kernel
  .amdhsa_next_free_vgpr 128
  .amdhsa_next_free_sgpr 102
  .amdhsa_accum_offset 128
  .amdhsa_group_segment_fixed_size 0
  .amdhsa_kernarg_size 104
  .amdhsa_user_sgpr_count 2
  .amdhsa_user_sgpr_kernarg_segment_ptr 1
  .amdhsa_system_sgpr_workgroup_id_x 1
.end_amdhsa_kernel
"""
open(sys.argv[1], "w").write(out)
```

```python
import sys, struct

NAME = "recurrent_scan__mha_block_cached__dense_activation_gelu__decode"

def f32(x):
    return "0x%08x" % struct.unpack("<I", struct.pack("<f", x))[0]

LOG2E = f32(1.4426950408889634)
SCALE = f32(128 ** -0.5)
INV640 = f32(1.0 / 640)
EPS = f32(1e-5)

OPT = dict(ring=8, nt=1, interleave=0, stamps=0, map=0, nw=16, nowq=0, nowo=0, noffn=0, ntw=0, sc1w=0, ffnst=0, fpar=0, rot=0, nwe=4, ldspre=0, woearly=0, nwo=16, kvsc=0, ntq=-1, nto=-1, ntf=-1)
for a in sys.argv[2:]:
    k, v = a.split("=")
    OPT[k] = int(v)
R = OPT["ring"]
NT = (" sc0" if OPT["kvsc"] & 1 else "") + (" sc1" if OPT["kvsc"] & 2 else "") + (" nt" if OPT["nt"] else "")
NTW = (" nt" if OPT["ntw"] else "") + (" sc1" if OPT["sc1w"] else "")
def _nt(k): return NTW if OPT[k] < 0 else (" nt" if OPT[k] else "")
NTQ, NTO, NTF = _nt("ntq"), _nt("nto"), _nt("ntf")

L_XN = 0
L_QP = 20480
L_QB = 28672
L_ML = 28928
L_FLAG = 29056
L_OB = 29184
L_H = 30720
L_BIG = 32768
L_HP = 32768 + 81920
L_S = 32768 + 81920 + 32768
L_CNT = 29060
L_FSYNC = 29064
LDS_BYTES = 163840

WS_BATCH = 59 * 2560

lines = []
def e(s):
    lines.append("    " + s)
def lab(s):
    lines.append(s + ":")
def c(s):
    lines.append("    ; " + s)

sK, sV, sX, sWQ, sWO, sW1, sW2, sWS = 44, 48, 52, 56, 60, 64, 68, 72

def srd(s, lo, hi, nrec):
    e(f"s_mov_b32 s{s}, s{lo}")
    e(f"s_and_b32 s{s+1}, s{hi}, 0xffff")
    e(f"s_mov_b32 s{s+2}, {nrec}")
    e(f"s_mov_b32 s{s+3}, 0x00020000")

vLANE, vG, vN = 1, 2, 3
vM = 4
vM8 = 8
vKV = 12
vB1 = 13
vQ = 16
vS = 20
vO = 24
vA = 28
vT = 36
vRING = 48
vW = 80
vACC = vW + 40
vPACC = vRING

def bf16r(dst, src, tmp=None):
    e(f"v_cvt_pk_bf16_f32 v{dst}, v{src}, v{src}")
    e(f"v_and_b32 v{dst}, 0xffff0000, v{dst}")

def row_allreduce(op, v, t):
    for sh in (8, 4, 2, 1):
        e("s_nop 1")
        e(f"{op}_dpp v{v}, v{v}, v{v} row_ror:{sh} row_mask:0xf bank_mask:0xf")

def wave_allreduce(op, v):
    row_allreduce(op, v, None)
    e("s_nop 1")
    e(f"v_readlane_b32 s8, v{v}, 0")
    e(f"v_readlane_b32 s9, v{v}, 16")
    e(f"v_readlane_b32 s10, v{v}, 32")
    e(f"v_readlane_b32 s11, v{v}, 48")
    e("s_nop 1")
    e(f"v_mov_b32 v{v}, s8")
    e(f"{op} v{v}, s9, v{v}")
    e(f"{op} v{v}, s10, v{v}")
    e(f"{op} v{v}, s11, v{v}")

def stamp(j):
    if OPT["stamps"]:
        e(f"s_memrealtime s[{86+2*j}:{87+2*j}]")
        e("s_waitcnt lgkmcnt(0)")

hdr = open("cdna_kernels/%s.s.ref" % NAME).read().split("; Override launch")[0]
out = hdr
out += f"; @launch grid=(256,1,1) block=(1024,1,1) lds={LDS_BYTES}\n"
out += f""".amdgcn_target "amdgcn-amd-amdhsa--gfx950"
.text
.globl {NAME}_kernel
.p2align 8
.type {NAME}_kernel,@function
{NAME}_kernel:
"""

e("s_cmp_ge_u32 s2, 256")
e("s_cbranch_scc1 L_end")
stamp(0)
e("s_load_dwordx16 s[16:31], s[0:1], 0")
e("s_load_dwordx8 s[32:39], s[0:1], 64")
e("s_load_dwordx2 s[40:41], s[0:1], 96")
e(f"v_and_b32 v{vLANE}, 63, v0")
e("v_lshrrev_b32 v2, 6, v0")
e("s_nop 0")
e("v_readfirstlane_b32 s3, v2")
e(f"v_lshrrev_b32 v{vG}, 4, v{vLANE}")
e(f"v_and_b32 v{vN}, 15, v{vLANE}")
if OPT["map"] == 0:
    e("s_lshr_b32 s4, s2, 5")
    e("s_and_b32 s5, s2, 31")
else:
    e("s_and_b32 s4, s2, 7")
    e("s_lshr_b32 s5, s2, 3")
e("s_lshl_b32 s15, s4, 5")
e("s_add_u32 s15, s15, s5")

e(f"v_and_b32 v{vT}, 7, v{vN}")
e(f"v_mov_b32 v{vT+1}, 0xffff")
e(f"v_mov_b32 v{vT+2}, 0xffff0000")
for r in range(4):
    for (dst, src) in ((vM + r, vN), (vM8 + r, vT)):
        e(f"v_mov_b32 v{dst}, 0")
        e(f"v_cmp_eq_u32 vcc, {2*r}, v{src}")
        e("s_nop 1")
        e(f"v_cndmask_b32 v{dst}, v{dst}, v{vT+1}, vcc")
        e(f"v_cmp_eq_u32 vcc, {2*r+1}, v{src}")
        e("s_nop 1")
        e(f"v_cndmask_b32 v{dst}, v{dst}, v{vT+2}, vcc")
e("s_waitcnt lgkmcnt(0)")
e("s_lshl_b32 s8, s15, 20")
e("s_add_u32 s10, s18, s8")
e("s_addc_u32 s11, s19, 0")
srd(sK, 10, 11, 1 << 20)
e("s_add_u32 s10, s20, s8")
e("s_addc_u32 s11, s21, 0")
srd(sV, 10, 11, 1 << 20)
srd(sX, 16, 17, 10240)
e("s_lshl_b32 s8, s5, 8")
e("s_add_u32 s10, s22, s8")
e("s_addc_u32 s11, s23, 0")
srd(sWQ, 10, 11, 0)
e(f"s_sub_u32 s{sWQ+2}, {640*8192}, s8")
if OPT["nowq"]: e(f"s_mov_b32 s{sWQ+2}, 0")
e("s_mul_i32 s8, s5, 163840")
e("s_add_u32 s10, s24, s8")
e("s_addc_u32 s11, s25, 0")
srd(sWO, 10, 11, 0 if OPT["nowo"] else 163840)

vX = vT + 4
e("s_and_b32 s8, s3, 7")
e("s_mul_i32 s8, s8, 1280")
e(f"v_lshlrev_b32 v{vT}, 4, v{vLANE}")
e(f"v_lshlrev_b32 v{vT+1}, 2, v{vLANE}")
e(f"buffer_load_dwordx4 v[{vX}:{vX+3}], v{vT}, s[{sX}:{sX+3}], s8 offen")
e(f"buffer_load_dword v{vX+4}, v{vT+1}, s[{sX}:{sX+3}], s8 offen offset:1024")
e("s_mul_i32 s8, s3, 40")
e(f"v_add_u32 v{vT+2}, s8, v{vG}")
e(f"v_lshlrev_b32 v{vT+2}, 13, v{vT+2}")
e(f"v_lshl_add_u32 v{vT+2}, v{vN}, 4, v{vT+2}")
for i in range(10):
    e(f"s_mov_b32 s6, {i*32768}")
    e(f"buffer_load_dwordx4 v[{vW+4*i}:{vW+4*i+3}], v{vT+2}, s[{sWQ}:{sWQ+3}], s6 offen{NTQ}")
e(f"v_lshlrev_b32 v{vKV}, 4, v{vLANE}")
sA = (42, 43)
sCUR = 76
e("s_lshr_b32 s7, s2, 1")
e("s_and_b32 s8, s2, 1")
e(f"s_cmp_eq_u32 s8, {OPT['fpar']}")
e("s_cselect_b32 s7, s7, 255")
e("s_cmp_lt_u32 s7, 27")
e("s_cselect_b32 s13, 12, 16")
e("s_cselect_b32 s101, 0, 1")
e(f"s_cselect_b32 s98, 0, {OPT['ldspre']}")
e("s_and_b32 s8, s2, 1")
e("s_cmp_eq_u32 s8, 0")
e(f"s_cselect_b32 s8, {OPT['nwe']}, {OPT['nwo']}")
e("s_cmp_eq_u32 s101, 1")
e("s_cselect_b32 s13, s8, s13")
e(f"s_add_u32 s{sA[1]}, s3, s13")
e("s_cmp_lt_u32 s3, s13")
e(f"s_cselect_b32 s{sA[0]}, s3, 1024")
e(f"s_cselect_b32 s{sA[1]}, s{sA[1]}, 1024")
e(f"s_mul_i32 s100, s2, {OPT['rot']}")
e(f"s_mov_b32 s{sCUR+2}, {1<<20}")
e(f"s_mov_b32 s{sCUR+3}, 0x00020000")

igc = [0]
def issue_group(st, sid):
    igc[0] += 1
    e(f"s_cmp_ge_u32 s{sid}, 512")
    e(f"s_cbranch_scc1 L_ig{igc[0]}")
    e(f"s_cmp_lt_u32 s{sid}, 256")
    e(f"s_cselect_b64 s[{sCUR}:{sCUR+1}], s[{sK}:{sK+1}], s[{sV}:{sV+1}]")
    e(f"s_add_u32 s6, s{sid}, s100")
    e("s_and_b32 s6, s6, 255")
    e("s_lshl_b32 s6, s6, 12")
    for i in range(4):
        r = vRING + 16 * st + 4 * i
        e(f"buffer_load_dwordx4 v[{r}:{r+3}], v{vKV}, s[{sCUR}:{sCUR+3}], s6 offen offset:{1024*i}{NT}")
    lab(f"L_ig{igc[0]}")

issue_group(0, sA[0])
issue_group(1, sA[1])
e("s_cmp_lt_u32 s3, s13")
e("s_cselect_b32 s98, s98, 0")
e("s_cmp_eq_u32 s98, 0")
e("s_cbranch_scc1 L_nopre")
e("s_lshl_b32 s99, s13, 1")
e("s_add_u32 s99, s99, s3")
e("s_lshl_b32 s6, s99, 12")
e("s_lshl_b32 s8, s3, 12")
for i in range(4):
    e(f"s_add_u32 s9, s8, {L_BIG + i*1024}")
    e("s_mov_b32 m0, s9")
    e(f"s_add_u32 s10, s6, {i*1024}")
    e(f"buffer_load_dwordx4 v{vKV}, s[{sK}:{sK+3}], s10 offen{NT} lds")
lab("L_nopre")
e(f"v_mov_b32 v{vT+2}, 0")
e("s_cmp_lt_u32 s7, 27")
e(f"s_cselect_b32 s8, 2, {2 + OPT['ldspre']}")
e("s_mul_i32 s8, s8, s13")
e(f"v_mov_b32 v{vT+3}, s8")
e(f"ds_write_b32 v{vT+2}, v{vT+3} offset:{L_CNT}")
e(f"ds_write_b32 v{vT+2}, v{vT+2} offset:{L_FLAG}")
e(f"ds_write_b32 v{vT+2}, v{vT+2} offset:{L_FSYNC}")

e("s_cmp_lt_u32 s3, s13")
e("s_cbranch_scc1 L_w1a")
e("s_waitcnt vmcnt(10)")
lab("L_w1a")
e("s_cmp_eq_u32 s98, 1")
e("s_cbranch_scc1 L_w1b")
e(f"s_waitcnt vmcnt({10+R})")
lab("L_w1b")
e(f"s_waitcnt vmcnt({14+R})")
U = [vA + k for k in range(8)] + [vT + 9, vT + 10]
for k in range(5):
    e(f"v_lshlrev_b32 v{U[2*k]}, 16, v{vX+k}")
    e(f"v_and_b32 v{U[2*k+1]}, 0xffff0000, v{vX+k}")
vSum = vT
e(f"v_add_f32 v{vSum}, v{U[0]}, v{U[1]}")
for k in range(2, 10):
    e(f"v_add_f32 v{vSum}, v{vSum}, v{U[k]}")
wave_allreduce("v_add_f32", vSum)
e(f"v_mul_f32 v{vSum}, {INV640}, v{vSum}")
vVar = vT + 1
vD = vT + 2
e(f"v_sub_f32 v{vD}, v{U[0]}, v{vSum}")
e(f"v_mul_f32 v{vVar}, v{vD}, v{vD}")
for k in range(1, 10):
    e(f"v_sub_f32 v{vD}, v{U[k]}, v{vSum}")
    e(f"v_fmac_f32 v{vVar}, v{vD}, v{vD}")
wave_allreduce("v_add_f32", vVar)
e(f"v_mul_f32 v{vVar}, {INV640}, v{vVar}")
bf16r(vSum, vSum)
bf16r(vVar, vVar)
e(f"v_add_f32 v{vVar}, {EPS}, v{vVar}")
bf16r(vVar, vVar)
e(f"v_sqrt_f32 v{vVar}, v{vVar}")
e("s_nop 0")
bf16r(vVar, vVar)
vRi = vT + 3
e(f"v_rcp_f32 v{vRi}, v{vVar}")
e("s_nop 0")
for k in range(10):
    u = U[k]
    e(f"v_sub_f32 v{u}, v{u}, v{vSum}")
    bf16r(u, u)
    e(f"v_mul_f32 v{vD}, v{u}, v{vRi}")
    e(f"v_fma_f32 v{u}, -v{vD}, v{vVar}, v{u}")
    e(f"v_fma_f32 v{u}, v{u}, v{vRi}, v{vD}")
    e(f"v_cvt_pk_bf16_f32 v{u}, v{u}, v{u}")
e("s_and_b32 s8, s3, 7")
e("s_mul_i32 s8, s8, 2560")
e(f"v_lshlrev_b32 v{vD}, 5, v{vLANE}")
e(f"v_add_u32 v{vD}, s8, v{vD}")
e(f"ds_write_b128 v{vD}, v[{vA}:{vA+3}] offset:{L_XN}")
e(f"ds_write_b128 v{vD}, v[{vA+4}:{vA+7}] offset:{L_XN+16}")
e(f"v_lshlrev_b32 v{vD}, 3, v{vLANE}")
e(f"v_add_u32 v{vD}, s8, v{vD}")
e(f"v_mov_b32 v{vT+6}, v{vT+9}")
e(f"v_mov_b32 v{vT+7}, v{vT+10}")
e(f"ds_write_b64 v{vD}, v[{vT+6}:{vT+7}] offset:{L_XN+2048}")
e("s_waitcnt lgkmcnt(0)")
e("s_barrier")

e("s_mul_i32 s8, s4, 640")
e("s_mul_i32 s9, s3, 40")
e("s_add_u32 s8, s8, s9")
e(f"v_lshl_add_u32 v{vT}, v{vN}, 2, v{vG}")
e(f"v_add_u32 v{vT}, s8, v{vT}")
e(f"v_lshlrev_b32 v{vT}, 2, v{vT}")
e(f"ds_read_b32 v{vT+1}, v{vT} offset:{L_XN}")
for r in range(4):
    e(f"v_mov_b32 v{vO+r}, 0")
e("s_cmp_lt_u32 s3, s13")
e("s_cbranch_scc1 L_w2a")
e("s_waitcnt vmcnt(0)")
lab("L_w2a")
e("s_cmp_eq_u32 s98, 1")
e("s_cbranch_scc1 L_w2b")
e(f"s_waitcnt vmcnt({R})")
lab("L_w2b")
e(f"s_waitcnt vmcnt({R+4}) lgkmcnt(0)")
e("s_nop 1")
for i in range(10):
    a = vA + 4 * (i % 2)
    for r in range(4):
        e(f"v_and_b32_dpp v{a+r}, v{vT+1}, v{vM+r} row_newbcast:{i} row_mask:0xf bank_mask:0xf")
    e("s_nop 1")
    e(f"v_mfma_f32_16x16x32_bf16 v[{vO}:{vO+3}], v[{a}:{a+3}], v[{vW+4*i}:{vW+4*i+3}], v[{vO}:{vO+3}]")
e(f"v_lshlrev_b32 v{vT+2}, 5, v{vN}")
e(f"v_lshl_add_u32 v{vT+2}, v{vG}, 4, v{vT+2}")
e("s_lshl_b32 s8, s3, 9")
e(f"v_add_u32 v{vT+2}, s8, v{vT+2}")
e("s_nop 7")
e("s_mov_b32 exec_hi, 0")
e(f"ds_write_b128 v{vT+2}, v[{vO}:{vO+3}] offset:{L_QP}")
e("s_mov_b64 exec, -1")
e("s_waitcnt lgkmcnt(0)")
e("s_barrier")
e("s_cmp_ge_u32 s3, 2")
e("s_cbranch_scc1 L_q_skip")
e(f"v_lshlrev_b32 v{vT}, 2, v0")
for k in range(16):
    e(f"ds_read_b32 v{vRING+0 if False else vW+k}, v{vT} offset:{L_QP+k*512}")
e("s_waitcnt lgkmcnt(0)")
for k in range(1, 16):
    e(f"v_add_f32 v{vW}, v{vW}, v{vW+k}")
e(f"v_cvt_pk_bf16_f32 v{vW}, v{vW}, v{vW}")
e(f"v_lshlrev_b32 v{vT}, 1, v0")
e(f"ds_write_b16 v{vT}, v{vW} offset:{L_QB}")
e("s_waitcnt lgkmcnt(0)")
lab("L_q_skip")
e("s_barrier")
e(f"v_lshlrev_b32 v{vT}, 4, v{vN}")
e(f"ds_read_b128 v[{vQ}:{vQ+3}], v{vT} offset:{L_QB}")

stamp(1)
stamp(2)
vNext, vSb, vSbV, vOne = 14, 15, vS, vS + 1
vMx, vL, vP = vT + 10, vT + 11, vS + 2
vZero = vS + 3
lab("L_kinit")
e("s_waitcnt lgkmcnt(0)")
for r in range(4):
    e(f"v_mov_b32 v{vO+r}, 0")
e(f"v_mov_b32 v{vOne}, 1")
e(f"v_mov_b32 v{vZero}, 0")
e(f"v_mov_b32 v{vMx}, 0xff800000")
e(f"v_mov_b32 v{vL}, 0")
e(f"v_lshl_add_u32 v{vSb}, v{vN}, 2, v{vG}")
e(f"v_lshlrev_b32 v{vSb}, 2, v{vSb}")
e(f"v_add_u32 v{vSb}, {L_S}, v{vSb}")
e(f"v_and_b32 v{vSbV}, 3, v{vN}")
e(f"v_lshl_add_u32 v{vSbV}, v{vSbV}, 2, v{vG}")
e(f"v_lshlrev_b32 v{vSbV}, 2, v{vSbV}")
e(f"v_add_u32 v{vSbV}, {L_S}, v{vSbV}")
e(f"v_and_b32 v{vT}, 3, v{vN}")
for k in (1, 2, 3):
    e(f"v_cmp_eq_u32 s[{78+2*k}:{79+2*k}], {k}, v{vT}")

def grab():
    e("s_mov_b64 exec, 1")
    e(f"ds_add_rtn_u32 v{vNext}, v{vZero}, v{vOne} offset:{L_CNT}")
    e("s_mov_b64 exec, -1")
e("s_cmp_ge_u32 s3, s13")
e("s_cselect_b32 s8, s101, 0")
e("s_cmp_eq_u32 s8, 1")
e("s_cbranch_scc1 L_mid0")
e("s_cmp_ge_u32 s3, s13")
e("s_cbranch_scc1 L_ffn")
grab()
e(f"s_cmp_lt_u32 s{sA[0]}, 1024")
e("s_cbranch_scc1 L_kpre")
for st in range(2):
    e("s_waitcnt lgkmcnt(0)")
    e(f"v_readfirstlane_b32 s{sA[st]}, v{vNext}")
    e("s_nop 3")
    issue_group(st, sA[st])
    grab()

def wo_loads():
    vWOoff = vT + 9
    e("s_lshl_b32 s8, s3, 3")
    e(f"v_add_u32 v{vWOoff}, s8, v{vG}")
    e("s_movk_i32 s9, 1280")
    e(f"v_mul_lo_u32 v{vWOoff}, v{vWOoff}, s9")
    e(f"v_lshl_add_u32 v{vWOoff}, v{vN}, 4, v{vWOoff}")
    for k in range(10):
        i, blk = divmod(k, 5)
        e(f"s_mov_b32 s6, {i*4*1280 + blk*256}")
        e(f"buffer_load_dwordx4 v[{vW+4*k}:{vW+4*k+3}], v{vWOoff}, s[{sWO}:{sWO+3}], s6 offen{NTO}")

def k_dots(base):
    T = [vT + i for i in range(4)]
    for i in range(4):
        e(f"v_mov_b32 v{T[i]}, 0")
    for k in range(4):
        for i in range(4):
            e(f"v_dot2c_f32_bf16 v{T[i]}, v{base+4*i+k}, v{vQ+k}")

def k_finish():
    T = [vT + i for i in range(4)]
    for sh in (8, 4, 2, 1):
        for i in range(4):
            e(f"v_add_f32_dpp v{T[i]}, v{T[i]}, v{T[i]} row_ror:{sh} row_mask:0xf bank_mask:0xf")
    for k in (1, 2, 3):
        e(f"v_cndmask_b32 v{T[0]}, v{T[0]}, v{T[k]}, s[{78+2*k}:{79+2*k}]")
    bf16r(T[0], T[0])
    e(f"v_mul_f32 v{T[0]}, {SCALE}, v{T[0]}")
    bf16r(T[0], T[0])
    e(f"v_mul_f32 v{T[0]}, {LOG2E}, v{T[0]}")
    e(f"v_max_f32 v{vMx}, v{vMx}, v{T[0]}")
    e("s_mov_b32 exec_lo, 0x000f000f")
    e("s_mov_b32 exec_hi, 0x000f000f")
    e(f"ds_write_b32 v{vT+4}, v{T[0]}")
    e("s_mov_b64 exec, -1")

lab("L_kpre")
e("s_cmp_eq_u32 s98, 0")
e("s_cbranch_scc1 L_kwo")
e("s_mov_b32 s98, 0")
e("s_lshl_b32 s8, s3, 12")
e(f"v_add_u32 v{vT+5}, s8, v{vKV}")
e("s_waitcnt vmcnt(0)")
for i in range(4):
    e(f"ds_read_b128 v[{vW+4*i}:{vW+4*i+3}], v{vT+5} offset:{L_BIG + 1024*i}")
e("s_lshl_b32 s8, s99, 6")
e(f"v_add_u32 v{vT+4}, s8, v{vSb}")
e("s_waitcnt lgkmcnt(0)")
k_dots(vW)
e("s_nop 2")
k_finish()
lab("L_kwo")
if OPT['woearly']: wo_loads()

def k_step(st):
    lab(f"L_k{st}")
    e(f"s_cmp_ge_u32 s{sA[st]}, 256")
    e(f"s_cbranch_scc1 L_mid{st}")
    e("s_waitcnt vmcnt(4)")
    k_dots(vRING + 16 * st)
    e("s_waitcnt lgkmcnt(0)")
    e(f"v_readfirstlane_b32 s9, v{vNext}")
    e(f"s_lshl_b32 s8, s{sA[st]}, 6")
    e(f"v_add_u32 v{vT+4}, s8, v{vSb}")
    e(f"s_mov_b32 s{sA[st]}, s9")
    issue_group(st, sA[st])
    grab()
    k_finish()

k_step(0)
k_step(1)
e("s_branch L_k0")
lab("L_ffn")
e("s_setprio 3")
e("s_sub_u32 s14, s3, 12")
e("s_lshl_b32 s8, s7, 7")
e("s_add_u32 s10, s28, s8")
e("s_addc_u32 s11, s29, 0")
srd(sW1, 10, 11, 0)
e(f"s_sub_u32 s{sW1+2}, {640*3456}, s8")
if OPT["noffn"]: e(f"s_mov_b32 s{sW1+2}, 0")
e("s_mul_i32 s8, s7, 81920")
e("s_add_u32 s10, s32, s8")
e("s_addc_u32 s11, s33, 0")
srd(sW2, 10, 11, 0 if OPT["noffn"] else 81920)
e(f"v_lshrrev_b32 v{vT+3}, 3, v{vN}")
e(f"v_lshl_add_u32 v{vT+3}, v{vG}, 1, v{vT+3}")
e("s_mul_i32 s8, s14, 160")
e(f"v_add_u32 v{vT}, s8, v{vT+3}")
e("s_movk_i32 s9, 3456")
e(f"v_mul_lo_u32 v{vT+1}, v{vT}, s9")
e(f"v_and_b32 v{vT+4}, 7, v{vN}")
e(f"v_lshl_add_u32 v{vT+1}, v{vT+4}, 4, v{vT+1}")
for t in range(20):
    e(f"s_mov_b32 s6, {t*8*3456}")
    e(f"buffer_load_dwordx4 v[{48+4*t}:{48+4*t+3}], v{vT+1}, s[{sW1}:{sW1+3}], s6 offen{NTF}")
e("s_lshl_b32 s8, s7, 7")
e(f"v_lshlrev_b32 v{vT+1}, 1, v{vLANE}")
e(f"v_add_u32 v{vT+1}, s8, v{vT+1}")
e(f"global_load_ushort v{vB1}, v{vT+1}, s[30:31]")
e(f"v_lshlrev_b32 v{vT+1}, 4, v{vLANE}")
e("s_mul_i32 s8, s14, 20480")
for t in range(20):
    e(f"s_add_u32 s9, s8, {t*1024}")
    e(f"s_add_u32 s10, s9, {L_BIG}")
    e("s_mov_b32 m0, s10")
    e("s_nop 0")
    e(f"buffer_load_dwordx4 v{vT+1}, s[{sW2}:{sW2+3}], s9 offen{NTF} lds")
e(f"v_lshlrev_b32 v{vT}, 2, v{vT}")
F = [16, 20, 24, vA + 4]
e("s_lshl_b32 s8, s14, 11")
e(f"s_add_u32 s8, s8, {L_HP}")
e(f"v_lshlrev_b32 v{vT+11}, 5, v{vN}")
e(f"v_add_u32 v{vT+11}, s8, v{vT+11}")
e(f"v_and_b32 v{vT+1}, 1, v{vG}")
e(f"v_lshl_add_u32 v{vT+11}, v{vT+1}, 4, v{vT+11}")
e(f"v_lshrrev_b32 v{vT+1}, 1, v{vG}")
e(f"v_lshl_add_u32 v{vT+11}, v{vT+1}, 9, v{vT+11}")
e("s_waitcnt vmcnt(21)")
for p in range(2):
    for a in F:
        for r in range(4):
            e(f"v_mov_b32 v{a+r}, 0")
    for k in range(4):
        bb = 4 * p + k
        for half in range(2):
            for t in range(10):
                e(f"ds_read_b32 v{vT+1+t}, v{vT} offset:{L_XN + bb*2560 + (half*10+t)*32}")
            for t in range(10):
                e(f"s_waitcnt lgkmcnt({9-t})")
                for r in range(4):
                    e(f"v_and_b32 v{vA+r}, v{vT+1+t}, v{vM8+r}")
                e("s_nop 1")
                w = 48 + 4 * (half * 10 + t)
                e(f"v_mfma_f32_16x16x32_bf16 v[{F[k]}:{F[k]+3}], v[{vA}:{vA+3}], v[{w}:{w+3}], v[{F[k]}:{F[k]+3}]")
    e("s_nop 7")
    for k in range(2):
        for r in range(4):
            e(f"v_permlane32_swap_b32 v{F[k]+r}, v{F[k+2]+r}")
    e("s_nop 1")
    for k in range(2):
        for r in range(4):
            e(f"v_add_f32_dpp v{F[k]+r}, v{F[k+2]+r}, v{F[k]+r} row_ror:8 row_mask:0xf bank_mask:0xf")
    e("s_mov_b32 exec_lo, 0x00ff00ff")
    e("s_mov_b32 exec_hi, 0x00ff00ff")
    for k in range(2):
        e(f"ds_write_b128 v{vT+11}, v[{F[k]}:{F[k]+3}] offset:{(4*p+k)*256}")
    e("s_mov_b64 exec, -1")
    e("s_nop 1")
e("s_waitcnt vmcnt(0) lgkmcnt(0)")
e(f"v_mov_b32 v{vT}, 0")
e(f"v_mov_b32 v{vT+1}, 1")
e("s_mov_b64 exec, 1")
e(f"ds_add_u32 v{vT}, v{vT+1} offset:{L_FSYNC}")
e("s_mov_b64 exec, -1")
e("s_mov_b32 s6, 0")
lab("L_fspin")
e(f"ds_read_b32 v{vT+2}, v{vT} offset:{L_FSYNC}")
e("s_waitcnt lgkmcnt(0)")
e(f"v_readfirstlane_b32 s8, v{vT+2}")
e("s_add_u32 s6, s6, 1")
e("s_cmp_ge_u32 s8, 4")
e("s_cbranch_scc1 L_fspin_done")
e("s_sleep 2")
e("s_cmp_lt_u32 s6, 0x100000")
e("s_cbranch_scc1 L_fspin")
lab("L_fspin_done")
e("s_lshl_b32 s8, s14, 9")
e(f"v_lshlrev_b32 v{vT}, 2, v{vLANE}")
e(f"v_add_u32 v{vT}, s8, v{vT}")
e(f"v_add_u32 v{vT+6}, {L_HP}, v{vT}")
e(f"v_lshlrev_b32 v{vT+2}, 16, v{vB1}")
for k in range(2):
    for j in range(4):
        e(f"ds_read_b32 v{vA+j}, v{vT+6} offset:{j*2048 + k*256}")
    e("s_waitcnt lgkmcnt(0)")
    e(f"v_add_f32 v{vT+3}, v{vA}, v{vA+1}")
    e(f"v_add_f32 v{vT+3}, v{vT+3}, v{vA+2}")
    e(f"v_add_f32 v{vT+3}, v{vT+3}, v{vA+3}")
    bf16r(vT + 3, vT + 3)
    e(f"v_add_f32 v{vT+3}, v{vT+3}, v{vT+2}")
    bf16r(vT + 3, vT + 3)
    e(f"v_mul_f32 v{vT+4}, v{vT+3}, v{vT+3}")
    e(f"v_mul_f32 v{vT+4}, v{vT+4}, v{vT+3}")
    e(f"v_mov_b32 v{vT+5}, {f32(0.044715)}")
    e(f"v_fma_f32 v{vT+4}, v{vT+4}, v{vT+5}, v{vT+3}")
    e(f"v_mul_f32 v{vT+4}, {f32(-2.0*0.7978845608028654*1.4426950408889634)}, v{vT+4}")
    e(f"v_exp_f32 v{vT+4}, v{vT+4}")
    e("s_nop 0")
    e(f"v_add_f32 v{vT+4}, 1.0, v{vT+4}")
    e(f"v_rcp_f32 v{vT+4}, v{vT+4}")
    e("s_nop 0")
    e(f"v_mul_f32 v{vT+3}, v{vT+3}, v{vT+4}")
    e(f"v_cvt_pk_bf16_f32 v{vT+3}, v{vT+3}, v{vT+3}")
    e(f"ds_write_b32 v{vT}, v{vT+3} offset:{L_H + k*256}")
e("s_waitcnt lgkmcnt(0)")
e("s_lshl_b32 s8, s14, 7")
e(f"v_lshrrev_b32 v{vT}, 3, v{vN}")
e(f"v_lshlrev_b32 v{vT}, 6, v{vT}")
e(f"v_add_u32 v{vT}, s8, v{vT}")
e(f"v_add_u32 v{vT}, v{vT}, v{vG}")
e(f"v_lshlrev_b32 v{vT}, 2, v{vT}")
for i in range(16):
    e(f"ds_read_b32 v{108+i}, v{vT} offset:{L_H + i*16}")
e("s_movk_i32 s9, 1280")
e(f"v_mul_lo_u32 v{vT+1}, v{vG}, s9")
e(f"v_lshl_add_u32 v{vT+1}, v{vN}, 4, v{vT+1}")
e(f"v_add_u32 v{vT+1}, {L_BIG}, v{vT+1}")
e(f"v_add_u32 v{vT+2}, {8*5120}, v{vT+1}")
for k in range(20):
    e(f"v_mov_b32 v{48+k}, 0")
def w2read(i):
    base = 68 + 20 * (i % 2)
    ad, ii = (vT + 1, i) if i < 8 else (vT + 2, i - 8)
    for blk in range(5):
        e(f"ds_read_b128 v[{base+4*blk}:{base+4*blk+3}], v{ad} offset:{ii*5120 + blk*256}")
w2read(0)
for i in range(16):
    base = 68 + 20 * (i % 2)
    if i < 15:
        w2read(i + 1)
        e("s_waitcnt lgkmcnt(5)")
    else:
        e("s_waitcnt lgkmcnt(0)")
    for r in range(4):
        e(f"v_and_b32 v{vA+r}, v{108+i}, v{vM8+r}")
    e("s_nop 1")
    for blk in range(5):
        e(f"v_mfma_f32_16x16x32_bf16 v[{48+4*blk}:{48+4*blk+3}], v[{vA}:{vA+3}], v[{base+4*blk}:{base+4*blk+3}], v[{48+4*blk}:{48+4*blk+3}]")
    e("s_nop 7")
e(f"v_lshrrev_b32 v{vT}, 1, v{vG}")
e("s_lshl_b32 s8, s14, 1")
e(f"v_add_u32 v{vT}, s8, v{vT}")
e(f"s_mov_b32 s9, {WS_BATCH}")
e(f"v_mul_lo_u32 v{vT}, v{vT}, s9")
e("s_add_u32 s8, s7, 32")
e("s_mul_i32 s8, s8, 2560")
e(f"v_add_u32 v{vT}, s8, v{vT}")
e(f"v_lshl_add_u32 v{vT}, v{vN}, 5, v{vT}")
e(f"v_and_b32 v{vT+1}, 1, v{vG}")
e(f"v_lshl_add_u32 v{vT}, v{vT+1}, 4, v{vT}")
for blk in range(5):
    e(f"global_store_dwordx4 v{vT}, v[{48+4*blk}:{48+4*blk+3}], s[40:41] offset:{blk*512} sc1")
e("s_waitcnt vmcnt(0)")
e("s_mov_b64 exec, 3")
e("s_lshl_b32 s8, s14, 1")
e(f"v_add_u32 v{vT}, s8, v{vLANE}")
e(f"v_lshlrev_b32 v{vT+3}, 2, v{vT}")
e(f"v_mov_b32 v{vT+1}, 1")
e(f"global_atomic_add v{vT+2}, v{vT+3}, v{vT+1}, s[38:39] sc0")
e("s_waitcnt vmcnt(0)")
e(f"v_lshlrev_b32 v{vT+1}, v{vT}, v{vT+1}")
e(f"v_cmp_eq_u32 vcc, 58, v{vT+2}")
e("s_nop 1")
e(f"v_cndmask_b32 v{vT+1}, 0, v{vT+1}, vcc")
e(f"v_mov_b32 v{vT}, 0")
e(f"ds_or_b32 v{vT}, v{vT+1} offset:{L_FLAG}")
e("s_mov_b64 exec, -1")
e("s_setprio 0")
e("s_mov_b32 s13, 16")
e(f"v_lshlrev_b32 v{vT}, 4, v{vN}")
e(f"ds_read_b128 v[{vQ}:{vQ+3}], v{vT} offset:{L_QB}")
e("s_branch L_kinit")
lab("L_mid0")
e("s_mov_b32 s12, 0")
e("s_branch L_mid")
lab("L_mid1")
e("s_mov_b32 s12, 1")
lab("L_mid")
stamp(3)
wave_allreduce("v_max_f32", vMx)
e("s_lshl_b32 s8, s3, 2")
e(f"v_mov_b32 v{vT}, s8")
e("s_mov_b64 exec, 1")
e(f"ds_write_b32 v{vT}, v{vMx} offset:{L_ML}")
e("s_mov_b64 exec, -1")
e("s_waitcnt lgkmcnt(0)")
e("s_barrier")
for k in range(4):
    e(f"ds_read_b128 v[{vA+4*(k%2)}:{vA+4*(k%2)+3}], v{vZero} offset:{L_ML+16*k}")
    if k % 2 == 1:
        e("s_waitcnt lgkmcnt(0)")
        for j in range(0, 8, 2):
            e(f"v_max3_f32 v{vMx}, v{vMx}, v{vA+j}, v{vA+j+1}")

if not OPT['woearly']: wo_loads()
e("s_cmp_eq_u32 s12, 1")
e("s_cbranch_scc1 L_v1")

def v_step(st):
    lab(f"L_v{st}")
    e(f"s_cmp_ge_u32 s{sA[st]}, 512")
    e("s_cbranch_scc1 L_vdone")
    e(f"s_sub_u32 s8, s{sA[st]}, 256")
    e("s_lshl_b32 s8, s8, 6")
    e(f"v_add_u32 v{vT}, s8, v{vSbV}")
    e(f"ds_read_b32 v{vP}, v{vT}")
    e("s_waitcnt lgkmcnt(0)")
    e(f"v_readfirstlane_b32 s{sA[st]}, v{vNext}")
    e(f"v_sub_f32 v{vP}, v{vP}, v{vMx}")
    e(f"v_exp_f32 v{vP}, v{vP}")
    e("s_nop 0")
    e(f"v_add_f32 v{vL}, v{vL}, v{vP}")
    e(f"v_cvt_pk_bf16_f32 v{vP}, v{vP}, v{vP}")
    e(f"s_cmp_lt_u32 s{sA[1-st]}, 512")
    e(f"s_cbranch_scc1 L_vw{st}")
    e("s_waitcnt vmcnt(0)")
    lab(f"L_vw{st}")
    e("s_waitcnt vmcnt(4)")
    e("s_nop 0")
    for i in range(4):
        a = vA + 4 * (i % 2)
        for r in range(4):
            e(f"v_and_b32_dpp v{a+r}, v{vP}, v{vM+r} row_newbcast:{i} row_mask:0xf bank_mask:0xf")
        if i % 2 == 1:
            e("s_nop 0")
            for u in range(2):
                aa = vA + 4 * u
                r0 = vRING + 16 * st + 4 * (i - 1 + u)
                e(f"v_mfma_f32_16x16x32_bf16 v[{vO}:{vO+3}], v[{aa}:{aa+3}], v[{r0}:{r0+3}], v[{vO}:{vO+3}]")
    issue_group(st, sA[st])
    grab()

v_step(0)
v_step(1)
e("s_branch L_v0")
lab("L_vdone")
wave_allreduce("v_add_f32", vL)
e(f"v_mul_f32 v{vL}, 0.25, v{vL}") if False else e(f"v_mul_f32 v{vL}, {f32(0.25)}, v{vL}")

stamp(4)
e(f"v_lshlrev_b32 v{vT+2}, 5, v{vN}")
e(f"v_lshl_add_u32 v{vT+2}, v{vG}, 4, v{vT+2}")
e("s_lshl_b32 s8, s3, 9")
e(f"v_add_u32 v{vT+2}, s8, v{vT+2}")
e("s_lshl_b32 s8, s3, 2")
e(f"v_mov_b32 v{vT+3}, s8")
e("s_nop 7")
e("s_mov_b32 exec_hi, 0")
e(f"ds_write_b128 v{vT+2}, v[{vO}:{vO+3}] offset:{L_QP}")
e("s_mov_b64 exec, 1")
e(f"ds_write_b32 v{vT+3}, v{vL} offset:{L_ML+64}")
e("s_mov_b64 exec, -1")
e("s_waitcnt lgkmcnt(0)")
e("s_barrier")
e("s_cmp_ge_u32 s3, 2")
e("s_cbranch_scc1 L_c_skip")
for k in range(4):
    e(f"ds_read_b128 v[{vRING+4*k}:{vRING+4*k+3}], v{vZero} offset:{L_ML+64+16*k}")
e(f"v_lshlrev_b32 v{vT}, 2, v0")
for k in range(16):
    e(f"ds_read_b32 v{vRING+16+k}, v{vT} offset:{L_QP+k*512}")
e("s_waitcnt lgkmcnt(0)")
for k in range(1, 16):
    e(f"v_add_f32 v{vRING}, v{vRING}, v{vRING+k}")
    e(f"v_add_f32 v{vRING+16}, v{vRING+16}, v{vRING+16+k}")
e(f"v_rcp_f32 v{vT+4}, v{vRING}")
e("s_nop 0")
e(f"v_mul_f32 v{vT+5}, v{vRING+16}, v{vT+4}")
e(f"v_fma_f32 v{vT+3}, -v{vT+5}, v{vRING}, v{vRING+16}")
e(f"v_fma_f32 v{vT+3}, v{vT+3}, v{vT+4}, v{vT+5}")
e(f"v_cvt_pk_bf16_f32 v{vT+3}, v{vT+3}, v{vT+3}")
e(f"ds_write_b32 v{vT}, v{vT+3} offset:{L_OB}")
e("s_waitcnt lgkmcnt(0)")
lab("L_c_skip")
e("s_barrier")

e("s_lshl_b32 s8, s3, 3")
e(f"v_add_u32 v{vT}, s8, v{vG}")
e(f"v_lshlrev_b32 v{vT}, 2, v{vT}")
e(f"ds_read_b32 v{vT+1}, v{vT} offset:{L_OB}")
e(f"ds_read_b32 v{vT+2}, v{vT} offset:{L_OB+16}")
for k in range(20):
    e(f"v_mov_b32 v{vPACC+k}, 0")
e("s_waitcnt lgkmcnt(0)")
for i in range(2):
    a = vA + 4 * i
    for r in range(4):
        e(f"v_and_b32 v{a+r}, v{vT+1+i}, v{vM+r}")
e("s_waitcnt vmcnt(0)")
e("s_nop 0")
for i in range(2):
    a = vA + 4 * i
    for blk in range(5):
        k = i * 5 + blk
        e(f"v_mfma_f32_16x16x32_bf16 v[{vPACC+4*blk}:{vPACC+4*blk+3}], v[{a}:{a+3}], v[{vW+4*k}:{vW+4*k+3}], v[{vPACC+4*blk}:{vPACC+4*blk+3}]")
e(f"v_lshlrev_b32 v{vT+2}, 5, v{vN}")
e(f"v_lshl_add_u32 v{vT+2}, v{vG}, 4, v{vT+2}")
e("s_mul_i32 s8, s3, 2560")
e(f"v_add_u32 v{vT+2}, s8, v{vT+2}")
e("s_nop 7")
e("s_mov_b32 exec_hi, 0")
for blk in range(5):
    e(f"ds_write_b128 v{vT+2}, v[{vPACC+4*blk}:{vPACC+4*blk+3}] offset:{L_BIG+blk*512}")
e("s_mov_b64 exec, -1")
e("s_waitcnt lgkmcnt(0)")
e("s_barrier")
e("s_cmp_ge_u32 s3, 3")
e("s_cbranch_scc1 L_s_skip")
e("v_cmp_gt_u32 vcc, 160, v0")
e("s_and_saveexec_b64 s[12:13], vcc")
e("s_cbranch_execz L_s_skip2")
e(f"v_lshlrev_b32 v{vT}, 4, v0")
e(f"v_add_u32 v{vT+1}, {L_BIG}, v{vT}")
for k in range(16):
    e(f"ds_read_b128 v[{vRING+4*k}:{vRING+4*k+3}], v{vT+1} offset:{k*2560}")
e(f"s_mul_i32 s8, s4, {WS_BATCH}")
e("s_mul_i32 s9, s5, 2560")
e("s_add_u32 s8, s8, s9")
e(f"v_add_u32 v{vT}, s8, v{vT}")
e("s_waitcnt lgkmcnt(0)")
for k in range(1, 16):
    for r in range(4):
        e(f"v_add_f32 v{vRING+r}, v{vRING+r}, v{vRING+4*k+r}")
e(f"global_store_dwordx4 v{vT}, v[{vRING}:{vRING+3}], s[40:41] sc1")
e("s_waitcnt vmcnt(0)")
lab("L_s_skip2")
e("s_mov_b64 exec, s[12:13]")
lab("L_s_skip")
e("s_barrier")
e("s_cmp_lg_u32 s3, 0")
e("s_cbranch_scc1 L_sig_done")
e("s_mov_b64 exec, 1")
stamp(5)
e("s_lshl_b32 s8, s4, 2")
e(f"v_mov_b32 v{vT}, s8")
e(f"v_mov_b32 v{vT+1}, 1")
e(f"global_atomic_add v{vT+2}, v{vT}, v{vT+1}, s[38:39] sc0")
e("s_waitcnt vmcnt(0)")
e(f"v_readfirstlane_b32 s8, v{vT+2}")
e("s_lshl_b32 s9, 1, s4")
e("s_cmp_eq_u32 s8, 58")
e("s_cselect_b32 s9, s9, 0")
e(f"v_mov_b32 v{vT}, 0")
e(f"v_mov_b32 v{vT+1}, s9")
e(f"ds_or_b32 v{vT}, v{vT+1} offset:{L_FLAG}")
e("s_waitcnt lgkmcnt(0)")
e("s_mov_b64 exec, -1")
lab("L_sig_done")
e("s_barrier")
e(f"v_mov_b32 v{vT}, 0")
e(f"ds_read_b32 v{vT+1}, v{vT} offset:{L_FLAG}")
e("s_waitcnt lgkmcnt(0)")
e(f"v_readfirstlane_b32 s7, v{vT+1}")
e("s_cmp_eq_u32 s7, 0")
e("s_cbranch_scc1 L_end2")

lab("L_fin_loop")
e("s_ff1_i32_b32 s14, s7")
e("s_lshl_b32 s8, 1, s14")
e("s_xor_b32 s7, s7, s8")
e(f"s_mul_i32 s8, s14, {WS_BATCH}")
e("s_add_u32 s10, s40, s8")
e("s_addc_u32 s11, s41, 0")
srd(sWS, 10, 11, WS_BATCH)
e(f"v_mul_u32_u24 v{vT}, 52429, v0")
e(f"v_lshrrev_b32 v{vT}, 23, v{vT}")
e(f"v_mul_u32_u24 v{vT+1}, 160, v{vT}")
e(f"v_sub_u32 v{vT+1}, v0, v{vT+1}")
e(f"v_lshlrev_b32 v{vT+1}, 4, v{vT+1}")
e("s_movk_i32 s9, 2560")
e(f"v_mul_lo_u32 v{vT+2}, v{vT}, s9")
e(f"v_add_u32 v{vT+2}, v{vT+2}, v{vT+1}")
e("v_cmp_gt_u32 vcc, 960, v0")
e("s_and_saveexec_b64 s[12:13], vcc")
e("s_cbranch_execz L_fin_a")
for j in range(10):
    e(f"s_mov_b32 s6, {j*6*2560}")
    e(f"buffer_load_dwordx4 v[{vRING+4*j}:{vRING+4*j+3}], v{vT+2}, s[{sWS}:{sWS+3}], s6 offen sc1")
e(f"v_cmp_gt_u32 vcc, 2, v{vT}")
e("s_waitcnt vmcnt(0)")
S4, Z4 = vRING, vRING + 24
for j in range(1, 5):
    for r in range(4):
        e(f"v_add_f32 v{S4+r}, v{S4+r}, v{vRING+4*j+r}")
for j in range(7, 10):
    for r in range(4):
        e(f"v_add_f32 v{Z4+r}, v{Z4+r}, v{vRING+4*j+r}")
for r in range(4):
    e(f"v_cndmask_b32 v{vT+4}, 0, v{vRING+20+r}, vcc")
    e(f"v_cndmask_b32 v{vT+5}, v{vRING+20+r}, 0, vcc")
    e(f"v_add_f32 v{S4+r}, v{S4+r}, v{vT+4}")
    e(f"v_add_f32 v{Z4+r}, v{Z4+r}, v{vT+5}")
e("s_movk_i32 s9, 5120")
e(f"v_mul_lo_u32 v{vT+2}, v{vT}, s9")
e(f"v_add_u32 v{vT+2}, v{vT+2}, v{vT+1}")
e(f"ds_write_b128 v{vT+2}, v[{S4}:{S4+3}] offset:{L_BIG}")
e(f"ds_write_b128 v{vT+2}, v[{Z4}:{Z4+3}] offset:{L_BIG+2560}")
e("s_waitcnt lgkmcnt(0)")
lab("L_fin_a")
e("s_mov_b64 exec, s[12:13]")
e("s_barrier")
e("v_cmp_gt_u32 vcc, 640, v0")
e("s_and_saveexec_b64 s[12:13], vcc")
e("s_cbranch_execz L_fin_b")
e(f"v_lshlrev_b32 v{vT}, 2, v0")
for k in range(6):
    e(f"ds_read_b32 v{vRING+k}, v{vT} offset:{L_BIG+k*5120}")
    e(f"ds_read_b32 v{vRING+8+k}, v{vT} offset:{L_BIG+k*5120+2560}")
e(f"v_lshlrev_b32 v{vT+1}, 1, v0")
e(f"global_load_ushort v{vT+2}, v{vT+1}, s[34:35]")
e("s_mul_i32 s8, s14, 1280")
e(f"v_add_u32 v{vT+1}, s8, v{vT+1}")
e(f"global_load_ushort v{vT+3}, v{vT+1}, s[16:17]")
e("s_waitcnt lgkmcnt(0)")
for k in range(1, 6):
    e(f"v_add_f32 v{vRING}, v{vRING}, v{vRING+k}")
    e(f"v_add_f32 v{vRING+8}, v{vRING+8}, v{vRING+8+k}")
bf16r(vRING, vRING)
bf16r(vRING + 8, vRING + 8)
e("s_waitcnt vmcnt(0)")
e(f"v_lshlrev_b32 v{vT+2}, 16, v{vT+2}")
e(f"v_lshlrev_b32 v{vT+3}, 16, v{vT+3}")
e(f"v_add_f32 v{vRING+8}, v{vRING+8}, v{vT+2}")
bf16r(vRING + 8, vRING + 8)
e(f"v_mul_f32 v{vT+4}, {f32(-1.4426950408889634)}, v{vRING+8}")
e(f"v_exp_f32 v{vT+4}, v{vT+4}")
e("s_nop 0")
e(f"v_add_f32 v{vT+4}, 1.0, v{vT+4}")
e(f"v_rcp_f32 v{vT+4}, v{vT+4}")
e("s_nop 0")
e(f"v_mul_f32 v{vRING+8}, v{vRING+8}, v{vT+4}")
bf16r(vRING + 8, vRING + 8)
e(f"v_mul_f32 v{vRING}, v{vRING}, v{vRING+8}")
bf16r(vRING, vRING)
e(f"v_add_f32 v{vRING}, v{vRING}, v{vT+3}")
e(f"v_cvt_pk_bf16_f32 v{vRING}, v{vRING}, v{vRING}")
e(f"global_store_short v{vT+1}, v{vRING}, s[36:37]")
e("s_waitcnt vmcnt(0)")
lab("L_fin_b")
e("s_mov_b64 exec, s[12:13]")
e("s_barrier")
e("s_cmp_lg_u32 s7, 0")
e("s_cbranch_scc1 L_fin_loop")
lab("L_end2")
if OPT["stamps"]:
    stamp(6)
    e("s_cmp_lg_u32 s3, 0")
    e("s_cbranch_scc1 L_end")
    e("s_mov_b64 exec, 1")
    e("s_lshl_b32 s8, s2, 6")
    e(f"s_add_u32 s8, s8, {32<<20}")
    e(f"v_mov_b32 v{vT}, s8")
    for j in range(7):
        e(f"v_mov_b32 v{vT+2}, s{86+2*j}")
        e(f"v_mov_b32 v{vT+3}, s{87+2*j}")
        e(f"global_store_dwordx2 v{vT}, v[{vT+2}:{vT+3}], s[40:41] offset:{8*j}")
        e("s_nop 1")
lab("L_end")
e("s_endpgm")

out += "\n".join(lines) + "\n"
out += f""".section .rodata,"a"
.p2align 6
.amdhsa_kernel {NAME}_kernel
  .amdhsa_next_free_vgpr 128
  .amdhsa_next_free_sgpr 102
  .amdhsa_accum_offset 128
  .amdhsa_group_segment_fixed_size 0
  .amdhsa_kernarg_size 104
  .amdhsa_user_sgpr_count 2
  .amdhsa_user_sgpr_kernarg_segment_ptr 1
  .amdhsa_system_sgpr_workgroup_id_x 1
.end_amdhsa_kernel
"""
open(sys.argv[1], "w").write(out)
```

```python
import sys, struct

NAME = "recurrent_scan__mha_block_cached__dense_activation_gelu__decode"

def f32(x):
    return "0x%08x" % struct.unpack("<I", struct.pack("<f", x))[0]

LOG2E = f32(1.4426950408889634)
SCALE = f32(128 ** -0.5)
INV640 = f32(1.0 / 640)
EPS = f32(1e-5)

OPT = dict(ring=8, nt=1, interleave=0, stamps=0, map=0, nw=16, nowq=0, nowo=0, noffn=0, ntw=0, sc1w=0, ffnst=0, fpar=0, rot=0, nwe=4, ldspre=0, woearly=0, nwo=16, kvsc=0, ntq=-1, nto=-1, ntf=-1, rk=1, r1=64, t1=3, r2=128, t2=4, r3=192, t3=6)
for a in sys.argv[2:]:
    k, v = a.split("=")
    OPT[k] = int(v)
R = OPT["ring"]
NT = (" sc0" if OPT["kvsc"] & 1 else "") + (" sc1" if OPT["kvsc"] & 2 else "") + (" nt" if OPT["nt"] else "")
NTW = (" nt" if OPT["ntw"] else "") + (" sc1" if OPT["sc1w"] else "")
def _nt(k): return NTW if OPT[k] < 0 else (" nt" if OPT[k] else "")
NTQ, NTO, NTF = _nt("ntq"), _nt("nto"), _nt("ntf")

L_XN = 0
L_QP = 20480
L_QB = 28672
L_ML = 28928
L_FLAG = 29056
L_OB = 29184
L_H = 30720
L_BIG = 32768
L_HP = 32768 + 81920
L_S = 32768 + 81920 + 32768
L_CNT = 29060
L_FSYNC = 29064
L_T = 29068
LDS_BYTES = 163840

WS_BATCH = 59 * 2560

lines = []
def e(s):
    lines.append("    " + s)
def lab(s):
    lines.append(s + ":")
def c(s):
    lines.append("    ; " + s)

sK, sV, sX, sWQ, sWO, sW1, sW2, sWS = 44, 48, 52, 56, 60, 64, 68, 72

def srd(s, lo, hi, nrec):
    e(f"s_mov_b32 s{s}, s{lo}")
    e(f"s_and_b32 s{s+1}, s{hi}, 0xffff")
    e(f"s_mov_b32 s{s+2}, {nrec}")
    e(f"s_mov_b32 s{s+3}, 0x00020000")

vLANE, vG, vN = 1, 2, 3
vM = 4
vM8 = 8
vKV = 12
vB1 = 13
vQ = 16
vS = 20
vO = 24
vA = 28
vT = 36
vRING = 48
vW = 80
vACC = vW + 40
vPACC = vRING

def bf16r(dst, src, tmp=None):
    e(f"v_cvt_pk_bf16_f32 v{dst}, v{src}, v{src}")
    e(f"v_and_b32 v{dst}, 0xffff0000, v{dst}")

def row_allreduce(op, v, t):
    for sh in (8, 4, 2, 1):
        e("s_nop 1")
        e(f"{op}_dpp v{v}, v{v}, v{v} row_ror:{sh} row_mask:0xf bank_mask:0xf")

def wave_allreduce(op, v):
    row_allreduce(op, v, None)
    e("s_nop 1")
    e(f"v_readlane_b32 s8, v{v}, 0")
    e(f"v_readlane_b32 s9, v{v}, 16")
    e(f"v_readlane_b32 s10, v{v}, 32")
    e(f"v_readlane_b32 s11, v{v}, 48")
    e("s_nop 1")
    e(f"v_mov_b32 v{v}, s8")
    e(f"{op} v{v}, s9, v{v}")
    e(f"{op} v{v}, s10, v{v}")
    e(f"{op} v{v}, s11, v{v}")

def stamp(j):
    if OPT["stamps"]:
        e(f"s_memrealtime s[{86+2*j}:{87+2*j}]")
        e("s_waitcnt lgkmcnt(0)")

hdr = open("cdna_kernels/%s.s.ref" % NAME).read().split("; Override launch")[0]
out = hdr
out += f"; @launch grid=(256,1,1) block=(1024,1,1) lds={LDS_BYTES}\n"
out += f""".amdgcn_target "amdgcn-amd-amdhsa--gfx950"
.text
.globl {NAME}_kernel
.p2align 8
.type {NAME}_kernel,@function
{NAME}_kernel:
"""

e("s_cmp_ge_u32 s2, 256")
e("s_cbranch_scc1 L_end")
stamp(0)
e("s_load_dwordx16 s[16:31], s[0:1], 0")
e("s_load_dwordx8 s[32:39], s[0:1], 64")
e("s_load_dwordx2 s[40:41], s[0:1], 96")
e(f"v_and_b32 v{vLANE}, 63, v0")
e("v_lshrrev_b32 v2, 6, v0")
e("s_nop 0")
e("v_readfirstlane_b32 s3, v2")
e(f"v_lshrrev_b32 v{vG}, 4, v{vLANE}")
e(f"v_and_b32 v{vN}, 15, v{vLANE}")
if OPT["map"] == 0:
    e("s_lshr_b32 s4, s2, 5")
    e("s_and_b32 s5, s2, 31")
else:
    e("s_and_b32 s4, s2, 7")
    e("s_lshr_b32 s5, s2, 3")
e("s_lshl_b32 s15, s4, 5")
e("s_add_u32 s15, s15, s5")

e(f"v_and_b32 v{vT}, 7, v{vN}")
e(f"v_mov_b32 v{vT+1}, 0xffff")
e(f"v_mov_b32 v{vT+2}, 0xffff0000")
for r in range(4):
    for (dst, src) in ((vM + r, vN), (vM8 + r, vT)):
        e(f"v_mov_b32 v{dst}, 0")
        e(f"v_cmp_eq_u32 vcc, {2*r}, v{src}")
        e("s_nop 1")
        e(f"v_cndmask_b32 v{dst}, v{dst}, v{vT+1}, vcc")
        e(f"v_cmp_eq_u32 vcc, {2*r+1}, v{src}")
        e("s_nop 1")
        e(f"v_cndmask_b32 v{dst}, v{dst}, v{vT+2}, vcc")
e("s_waitcnt lgkmcnt(0)")
e("s_lshl_b32 s8, s15, 20")
e("s_add_u32 s10, s18, s8")
e("s_addc_u32 s11, s19, 0")
srd(sK, 10, 11, 1 << 20)
e("s_add_u32 s10, s20, s8")
e("s_addc_u32 s11, s21, 0")
srd(sV, 10, 11, 1 << 20)
srd(sX, 16, 17, 10240)
e("s_lshl_b32 s8, s5, 8")
e("s_add_u32 s10, s22, s8")
e("s_addc_u32 s11, s23, 0")
srd(sWQ, 10, 11, 0)
e(f"s_sub_u32 s{sWQ+2}, {640*8192}, s8")
if OPT["nowq"]: e(f"s_mov_b32 s{sWQ+2}, 0")
e("s_mul_i32 s8, s5, 163840")
e("s_add_u32 s10, s24, s8")
e("s_addc_u32 s11, s25, 0")
srd(sWO, 10, 11, 0 if OPT["nowo"] else 163840)

vX = vT + 4
e("s_and_b32 s8, s3, 7")
e("s_mul_i32 s8, s8, 1280")
e(f"v_lshlrev_b32 v{vT}, 4, v{vLANE}")
e(f"v_lshlrev_b32 v{vT+1}, 2, v{vLANE}")
e(f"buffer_load_dwordx4 v[{vX}:{vX+3}], v{vT}, s[{sX}:{sX+3}], s8 offen")
e(f"buffer_load_dword v{vX+4}, v{vT+1}, s[{sX}:{sX+3}], s8 offen offset:1024")
e("s_mul_i32 s8, s3, 40")
e(f"v_add_u32 v{vT+2}, s8, v{vG}")
e(f"v_lshlrev_b32 v{vT+2}, 13, v{vT+2}")
e(f"v_lshl_add_u32 v{vT+2}, v{vN}, 4, v{vT+2}")
for i in range(10):
    e(f"s_mov_b32 s6, {i*32768}")
    e(f"buffer_load_dwordx4 v[{vW+4*i}:{vW+4*i+3}], v{vT+2}, s[{sWQ}:{sWQ+3}], s6 offen{NTQ}")
e(f"v_lshlrev_b32 v{vKV}, 4, v{vLANE}")
sA = (42, 43)
sCUR = 76
e("s_lshr_b32 s7, s2, 1")
e("s_and_b32 s8, s2, 1")
e(f"s_cmp_eq_u32 s8, {OPT['fpar']}")
e("s_cselect_b32 s7, s7, 255")
e("s_cmp_lt_u32 s7, 27")
e("s_cselect_b32 s13, 12, 16")
e("s_cselect_b32 s101, 0, 1")
e(f"s_cselect_b32 s98, 0, {OPT['ldspre']}")
e("s_and_b32 s8, s2, 1")
e("s_cmp_eq_u32 s8, 0")
e(f"s_cselect_b32 s8, {OPT['nwe']}, {OPT['nwo']}")
e("s_cmp_eq_u32 s101, 1")
e("s_cselect_b32 s13, s8, s13")
e(f"s_add_u32 s{sA[1]}, s3, s13")
e("s_cmp_lt_u32 s3, s13")
e(f"s_cselect_b32 s{sA[0]}, s3, 1024")
e(f"s_cselect_b32 s{sA[1]}, s{sA[1]}, 1024")
e(f"s_mul_i32 s100, s2, {OPT['rot']}")
e(f"s_mov_b32 s{sCUR+2}, {1<<20}")
e(f"s_mov_b32 s{sCUR+3}, 0x00020000")

igc = [0]
def issue_group(st, sid):
    igc[0] += 1
    e(f"s_cmp_ge_u32 s{sid}, 512")
    e(f"s_cbranch_scc1 L_ig{igc[0]}")
    e(f"s_cmp_lt_u32 s{sid}, 256")
    e(f"s_cselect_b64 s[{sCUR}:{sCUR+1}], s[{sK}:{sK+1}], s[{sV}:{sV+1}]")
    e(f"s_add_u32 s6, s{sid}, s100")
    e("s_and_b32 s6, s6, 255")
    e("s_lshl_b32 s6, s6, 12")
    for i in range(4):
        r = vRING + 16 * st + 4 * i
        e(f"buffer_load_dwordx4 v[{r}:{r+3}], v{vKV}, s[{sCUR}:{sCUR+3}], s6 offen offset:{1024*i}{NT}")
    lab(f"L_ig{igc[0]}")

issue_group(0, sA[0])
issue_group(1, sA[1])
e("s_cmp_lt_u32 s3, s13")
e("s_cselect_b32 s98, s98, 0")
e("s_cmp_eq_u32 s98, 0")
e("s_cbranch_scc1 L_nopre")
e("s_lshl_b32 s99, s13, 1")
e("s_add_u32 s99, s99, s3")
e("s_lshl_b32 s6, s99, 12")
e("s_lshl_b32 s8, s3, 12")
for i in range(4):
    e(f"s_add_u32 s9, s8, {L_BIG + i*1024}")
    e("s_mov_b32 m0, s9")
    e(f"s_add_u32 s10, s6, {i*1024}")
    e(f"buffer_load_dwordx4 v{vKV}, s[{sK}:{sK+3}], s10 offen{NT} lds")
lab("L_nopre")
e(f"v_mov_b32 v{vT+2}, 0")
e("s_cmp_lt_u32 s7, 27")
e(f"s_cselect_b32 s8, 2, {2 + OPT['ldspre']}")
e("s_mul_i32 s8, s8, s13")
e(f"v_mov_b32 v{vT+3}, s8")
e(f"ds_write_b32 v{vT+2}, v{vT+3} offset:{L_CNT}")
e(f"ds_write_b32 v{vT+2}, v{vT+2} offset:{L_FLAG}")
e(f"ds_write_b32 v{vT+2}, v{vT+2} offset:{L_FSYNC}")
e(f"ds_write_b32 v{vT+2}, v{vT+2} offset:{L_T}")

e("s_cmp_lt_u32 s3, s13")
e("s_cbranch_scc1 L_w1a")
e("s_waitcnt vmcnt(10)")
lab("L_w1a")
e("s_cmp_eq_u32 s98, 1")
e("s_cbranch_scc1 L_w1b")
e(f"s_waitcnt vmcnt({10+R})")
lab("L_w1b")
e(f"s_waitcnt vmcnt({14+R})")
U = [vA + k for k in range(8)] + [vT + 9, vT + 10]
for k in range(5):
    e(f"v_lshlrev_b32 v{U[2*k]}, 16, v{vX+k}")
    e(f"v_and_b32 v{U[2*k+1]}, 0xffff0000, v{vX+k}")
vSum = vT
e(f"v_add_f32 v{vSum}, v{U[0]}, v{U[1]}")
for k in range(2, 10):
    e(f"v_add_f32 v{vSum}, v{vSum}, v{U[k]}")
wave_allreduce("v_add_f32", vSum)
e(f"v_mul_f32 v{vSum}, {INV640}, v{vSum}")
vVar = vT + 1
vD = vT + 2
e(f"v_sub_f32 v{vD}, v{U[0]}, v{vSum}")
e(f"v_mul_f32 v{vVar}, v{vD}, v{vD}")
for k in range(1, 10):
    e(f"v_sub_f32 v{vD}, v{U[k]}, v{vSum}")
    e(f"v_fmac_f32 v{vVar}, v{vD}, v{vD}")
wave_allreduce("v_add_f32", vVar)
e(f"v_mul_f32 v{vVar}, {INV640}, v{vVar}")
bf16r(vSum, vSum)
bf16r(vVar, vVar)
e(f"v_add_f32 v{vVar}, {EPS}, v{vVar}")
bf16r(vVar, vVar)
e(f"v_sqrt_f32 v{vVar}, v{vVar}")
e("s_nop 0")
bf16r(vVar, vVar)
vRi = vT + 3
e(f"v_rcp_f32 v{vRi}, v{vVar}")
e("s_nop 0")
for k in range(10):
    u = U[k]
    e(f"v_sub_f32 v{u}, v{u}, v{vSum}")
    bf16r(u, u)
    e(f"v_mul_f32 v{vD}, v{u}, v{vRi}")
    e(f"v_fma_f32 v{u}, -v{vD}, v{vVar}, v{u}")
    e(f"v_fma_f32 v{u}, v{u}, v{vRi}, v{vD}")
    e(f"v_cvt_pk_bf16_f32 v{u}, v{u}, v{u}")
e("s_and_b32 s8, s3, 7")
e("s_mul_i32 s8, s8, 2560")
e(f"v_lshlrev_b32 v{vD}, 5, v{vLANE}")
e(f"v_add_u32 v{vD}, s8, v{vD}")
e(f"ds_write_b128 v{vD}, v[{vA}:{vA+3}] offset:{L_XN}")
e(f"ds_write_b128 v{vD}, v[{vA+4}:{vA+7}] offset:{L_XN+16}")
e(f"v_lshlrev_b32 v{vD}, 3, v{vLANE}")
e(f"v_add_u32 v{vD}, s8, v{vD}")
e(f"v_mov_b32 v{vT+6}, v{vT+9}")
e(f"v_mov_b32 v{vT+7}, v{vT+10}")
e(f"ds_write_b64 v{vD}, v[{vT+6}:{vT+7}] offset:{L_XN+2048}")
e("s_waitcnt lgkmcnt(0)")
e("s_barrier")

e("s_mul_i32 s8, s4, 640")
e("s_mul_i32 s9, s3, 40")
e("s_add_u32 s8, s8, s9")
e(f"v_lshl_add_u32 v{vT}, v{vN}, 2, v{vG}")
e(f"v_add_u32 v{vT}, s8, v{vT}")
e(f"v_lshlrev_b32 v{vT}, 2, v{vT}")
e(f"ds_read_b32 v{vT+1}, v{vT} offset:{L_XN}")
for r in range(4):
    e(f"v_mov_b32 v{vO+r}, 0")
e("s_cmp_lt_u32 s3, s13")
e("s_cbranch_scc1 L_w2a")
e("s_waitcnt vmcnt(0)")
lab("L_w2a")
e("s_cmp_eq_u32 s98, 1")
e("s_cbranch_scc1 L_w2b")
e(f"s_waitcnt vmcnt({R})")
lab("L_w2b")
e(f"s_waitcnt vmcnt({R+4}) lgkmcnt(0)")
e("s_nop 1")
for i in range(10):
    a = vA + 4 * (i % 2)
    for r in range(4):
        e(f"v_and_b32_dpp v{a+r}, v{vT+1}, v{vM+r} row_newbcast:{i} row_mask:0xf bank_mask:0xf")
    e("s_nop 1")
    e(f"v_mfma_f32_16x16x32_bf16 v[{vO}:{vO+3}], v[{a}:{a+3}], v[{vW+4*i}:{vW+4*i+3}], v[{vO}:{vO+3}]")
e(f"v_lshlrev_b32 v{vT+2}, 5, v{vN}")
e(f"v_lshl_add_u32 v{vT+2}, v{vG}, 4, v{vT+2}")
e("s_lshl_b32 s8, s3, 9")
e(f"v_add_u32 v{vT+2}, s8, v{vT+2}")
e("s_nop 7")
e("s_mov_b32 exec_hi, 0")
e(f"ds_write_b128 v{vT+2}, v[{vO}:{vO+3}] offset:{L_QP}")
e("s_mov_b64 exec, -1")
e("s_waitcnt lgkmcnt(0)")
e("s_barrier")
e("s_cmp_ge_u32 s3, 2")
e("s_cbranch_scc1 L_q_skip")
e(f"v_lshlrev_b32 v{vT}, 2, v0")
for k in range(16):
    e(f"ds_read_b32 v{vRING+0 if False else vW+k}, v{vT} offset:{L_QP+k*512}")
e("s_waitcnt lgkmcnt(0)")
for k in range(1, 16):
    e(f"v_add_f32 v{vW}, v{vW}, v{vW+k}")
e(f"v_cvt_pk_bf16_f32 v{vW}, v{vW}, v{vW}")
e(f"v_lshlrev_b32 v{vT}, 1, v0")
e(f"ds_write_b16 v{vT}, v{vW} offset:{L_QB}")
e("s_waitcnt lgkmcnt(0)")
lab("L_q_skip")
e("s_barrier")
e(f"v_lshlrev_b32 v{vT}, 4, v{vN}")
e(f"ds_read_b128 v[{vQ}:{vQ+3}], v{vT} offset:{L_QB}")

stamp(1)
stamp(2)
vNext, vSb, vSbV, vOne = 14, 15, vS, vS + 1
vMx, vL, vP = vT + 10, vT + 11, vS + 2
vZero = vS + 3
lab("L_kinit")
e("s_waitcnt lgkmcnt(0)")
for r in range(4):
    e(f"v_mov_b32 v{vO+r}, 0")
e(f"v_mov_b32 v{vOne}, 1")
e(f"v_mov_b32 v{vZero}, 0")
e(f"v_mov_b32 v{vMx}, 0xff800000")
e(f"v_mov_b32 v{vL}, 0")
e(f"v_lshl_add_u32 v{vSb}, v{vN}, 2, v{vG}")
e(f"v_lshlrev_b32 v{vSb}, 2, v{vSb}")
e(f"v_add_u32 v{vSb}, {L_S}, v{vSb}")
e(f"v_and_b32 v{vSbV}, 3, v{vN}")
e(f"v_lshl_add_u32 v{vSbV}, v{vSbV}, 2, v{vG}")
e(f"v_lshlrev_b32 v{vSbV}, 2, v{vSbV}")
e(f"v_add_u32 v{vSbV}, {L_S}, v{vSbV}")
e(f"v_and_b32 v{vT}, 3, v{vN}")
for k in (1, 2, 3):
    e(f"v_cmp_eq_u32 s[{78+2*k}:{79+2*k}], {k}, v{vT}")

def grab():
    e("s_mov_b64 exec, 1")
    e(f"ds_add_rtn_u32 v{vNext}, v{vZero}, v{vOne} offset:{L_CNT}")
    e("s_mov_b64 exec, -1")
e("s_cmp_ge_u32 s3, s13")
e("s_cselect_b32 s8, s101, 0")
e("s_cmp_eq_u32 s8, 1")
e("s_cbranch_scc1 L_mid0")
e("s_cmp_ge_u32 s3, s13")
e("s_cbranch_scc1 L_ffn")
grab()
e(f"s_cmp_lt_u32 s{sA[0]}, 1024")
e("s_cbranch_scc1 L_kpre")
for st in range(2):
    e("s_waitcnt lgkmcnt(0)")
    e(f"v_readfirstlane_b32 s{sA[st]}, v{vNext}")
    e("s_nop 3")
    issue_group(st, sA[st])
    grab()

def wo_loads():
    vWOoff = vT + 9
    e("s_lshl_b32 s8, s3, 3")
    e(f"v_add_u32 v{vWOoff}, s8, v{vG}")
    e("s_movk_i32 s9, 1280")
    e(f"v_mul_lo_u32 v{vWOoff}, v{vWOoff}, s9")
    e(f"v_lshl_add_u32 v{vWOoff}, v{vN}, 4, v{vWOoff}")
    for k in range(10):
        i, blk = divmod(k, 5)
        e(f"s_mov_b32 s6, {i*4*1280 + blk*256}")
        e(f"buffer_load_dwordx4 v[{vW+4*k}:{vW+4*k+3}], v{vWOoff}, s[{sWO}:{sWO+3}], s6 offen{NTO}")

def k_dots(base):
    T = [vT + i for i in range(4)]
    for i in range(4):
        e(f"v_mov_b32 v{T[i]}, 0")
    for k in range(4):
        for i in range(4):
            e(f"v_dot2c_f32_bf16 v{T[i]}, v{base+4*i+k}, v{vQ+k}")

def k_finish():
    T = [vT + i for i in range(4)]
    for sh in (8, 4, 2, 1):
        for i in range(4):
            e(f"v_add_f32_dpp v{T[i]}, v{T[i]}, v{T[i]} row_ror:{sh} row_mask:0xf bank_mask:0xf")
    for k in (1, 2, 3):
        e(f"v_cndmask_b32 v{T[0]}, v{T[0]}, v{T[k]}, s[{78+2*k}:{79+2*k}]")
    bf16r(T[0], T[0])
    e(f"v_mul_f32 v{T[0]}, {SCALE}, v{T[0]}")
    bf16r(T[0], T[0])
    e(f"v_mul_f32 v{T[0]}, {LOG2E}, v{T[0]}")
    e(f"v_max_f32 v{vMx}, v{vMx}, v{T[0]}")
    e("s_mov_b32 exec_lo, 0x000f000f")
    e("s_mov_b32 exec_hi, 0x000f000f")
    e(f"ds_write_b32 v{vT+4}, v{T[0]}")
    e("s_mov_b64 exec, -1")

lab("L_kpre")
e("s_cmp_eq_u32 s98, 0")
e("s_cbranch_scc1 L_kwo")
e("s_mov_b32 s98, 0")
e("s_lshl_b32 s8, s3, 12")
e(f"v_add_u32 v{vT+5}, s8, v{vKV}")
e("s_waitcnt vmcnt(0)")
for i in range(4):
    e(f"ds_read_b128 v[{vW+4*i}:{vW+4*i+3}], v{vT+5} offset:{L_BIG + 1024*i}")
e("s_lshl_b32 s8, s99, 6")
e(f"v_add_u32 v{vT+4}, s8, v{vSb}")
e("s_waitcnt lgkmcnt(0)")
k_dots(vW)
e("s_nop 2")
k_finish()
lab("L_kwo")
if OPT['woearly']: wo_loads()

def k_step(st):
    lab(f"L_k{st}")
    e(f"s_cmp_ge_u32 s{sA[st]}, 256")
    e(f"s_cbranch_scc1 L_mid{st}")
    e("s_waitcnt vmcnt(4)")
    k_dots(vRING + 16 * st)
    e("s_waitcnt lgkmcnt(0)")
    e(f"v_readfirstlane_b32 s9, v{vNext}")
    e(f"s_lshl_b32 s8, s{sA[st]}, 6")
    e(f"v_add_u32 v{vT+4}, s8, v{vSb}")
    e(f"s_mov_b32 s{sA[st]}, s9")
    issue_group(st, sA[st])
    grab()
    k_finish()

k_step(0)
k_step(1)
e("s_branch L_k0")
lab("L_ffn")
e("s_setprio 3")
e("s_sub_u32 s14, s3, 12")
e("s_lshl_b32 s8, s7, 7")
e("s_add_u32 s10, s28, s8")
e("s_addc_u32 s11, s29, 0")
srd(sW1, 10, 11, 0)
e(f"s_sub_u32 s{sW1+2}, {640*3456}, s8")
if OPT["noffn"]: e(f"s_mov_b32 s{sW1+2}, 0")
e("s_mul_i32 s8, s7, 81920")
e("s_add_u32 s10, s32, s8")
e("s_addc_u32 s11, s33, 0")
srd(sW2, 10, 11, 0 if OPT["noffn"] else 81920)
e(f"v_lshrrev_b32 v{vT+3}, 3, v{vN}")
e(f"v_lshl_add_u32 v{vT+3}, v{vG}, 1, v{vT+3}")
e("s_mul_i32 s8, s14, 160")
e(f"v_add_u32 v{vT}, s8, v{vT+3}")
e("s_movk_i32 s9, 3456")
e(f"v_mul_lo_u32 v{vT+1}, v{vT}, s9")
e(f"v_and_b32 v{vT+4}, 7, v{vN}")
e(f"v_lshl_add_u32 v{vT+1}, v{vT+4}, 4, v{vT+1}")
for t in range(20):
    e(f"s_mov_b32 s6, {t*8*3456}")
    e(f"buffer_load_dwordx4 v[{48+4*t}:{48+4*t+3}], v{vT+1}, s[{sW1}:{sW1+3}], s6 offen{NTF}")
e("s_lshl_b32 s8, s7, 7")
e(f"v_lshlrev_b32 v{vT+1}, 1, v{vLANE}")
e(f"v_add_u32 v{vT+1}, s8, v{vT+1}")
e(f"global_load_ushort v{vB1}, v{vT+1}, s[30:31]")
e(f"v_lshlrev_b32 v{vT+1}, 4, v{vLANE}")
e("s_mul_i32 s8, s14, 20480")
for t in range(20):
    e(f"s_add_u32 s9, s8, {t*1024}")
    e(f"s_add_u32 s10, s9, {L_BIG}")
    e("s_mov_b32 m0, s10")
    e("s_nop 0")
    e(f"buffer_load_dwordx4 v{vT+1}, s[{sW2}:{sW2+3}], s9 offen{NTF} lds")
e(f"v_lshlrev_b32 v{vT}, 2, v{vT}")
F = [16, 20, 24, vA + 4]
e("s_lshl_b32 s8, s14, 11")
e(f"s_add_u32 s8, s8, {L_HP}")
e(f"v_lshlrev_b32 v{vT+11}, 5, v{vN}")
e(f"v_add_u32 v{vT+11}, s8, v{vT+11}")
e(f"v_and_b32 v{vT+1}, 1, v{vG}")
e(f"v_lshl_add_u32 v{vT+11}, v{vT+1}, 4, v{vT+11}")
e(f"v_lshrrev_b32 v{vT+1}, 1, v{vG}")
e(f"v_lshl_add_u32 v{vT+11}, v{vT+1}, 9, v{vT+11}")
e("s_waitcnt vmcnt(21)")
for p in range(2):
    for a in F:
        for r in range(4):
            e(f"v_mov_b32 v{a+r}, 0")
    for k in range(4):
        bb = 4 * p + k
        for half in range(2):
            for t in range(10):
                e(f"ds_read_b32 v{vT+1+t}, v{vT} offset:{L_XN + bb*2560 + (half*10+t)*32}")
            for t in range(10):
                e(f"s_waitcnt lgkmcnt({9-t})")
                for r in range(4):
                    e(f"v_and_b32 v{vA+r}, v{vT+1+t}, v{vM8+r}")
                e("s_nop 1")
                w = 48 + 4 * (half * 10 + t)
                e(f"v_mfma_f32_16x16x32_bf16 v[{F[k]}:{F[k]+3}], v[{vA}:{vA+3}], v[{w}:{w+3}], v[{F[k]}:{F[k]+3}]")
    e("s_nop 7")
    for k in range(2):
        for r in range(4):
            e(f"v_permlane32_swap_b32 v{F[k]+r}, v{F[k+2]+r}")
    e("s_nop 1")
    for k in range(2):
        for r in range(4):
            e(f"v_add_f32_dpp v{F[k]+r}, v{F[k+2]+r}, v{F[k]+r} row_ror:8 row_mask:0xf bank_mask:0xf")
    e("s_mov_b32 exec_lo, 0x00ff00ff")
    e("s_mov_b32 exec_hi, 0x00ff00ff")
    for k in range(2):
        e(f"ds_write_b128 v{vT+11}, v[{F[k]}:{F[k]+3}] offset:{(4*p+k)*256}")
    e("s_mov_b64 exec, -1")
    e("s_nop 1")
e("s_waitcnt vmcnt(0) lgkmcnt(0)")
e(f"v_mov_b32 v{vT}, 0")
e(f"v_mov_b32 v{vT+1}, 1")
e("s_mov_b64 exec, 1")
e(f"ds_add_u32 v{vT}, v{vT+1} offset:{L_FSYNC}")
e("s_mov_b64 exec, -1")
e("s_mov_b32 s6, 0")
lab("L_fspin")
e(f"ds_read_b32 v{vT+2}, v{vT} offset:{L_FSYNC}")
e("s_waitcnt lgkmcnt(0)")
e(f"v_readfirstlane_b32 s8, v{vT+2}")
e("s_add_u32 s6, s6, 1")
e("s_cmp_ge_u32 s8, 4")
e("s_cbranch_scc1 L_fspin_done")
e("s_sleep 2")
e("s_cmp_lt_u32 s6, 0x100000")
e("s_cbranch_scc1 L_fspin")
lab("L_fspin_done")
e("s_lshl_b32 s8, s14, 9")
e(f"v_lshlrev_b32 v{vT}, 2, v{vLANE}")
e(f"v_add_u32 v{vT}, s8, v{vT}")
e(f"v_add_u32 v{vT+6}, {L_HP}, v{vT}")
e(f"v_lshlrev_b32 v{vT+2}, 16, v{vB1}")
for k in range(2):
    for j in range(4):
        e(f"ds_read_b32 v{vA+j}, v{vT+6} offset:{j*2048 + k*256}")
    e("s_waitcnt lgkmcnt(0)")
    e(f"v_add_f32 v{vT+3}, v{vA}, v{vA+1}")
    e(f"v_add_f32 v{vT+3}, v{vT+3}, v{vA+2}")
    e(f"v_add_f32 v{vT+3}, v{vT+3}, v{vA+3}")
    bf16r(vT + 3, vT + 3)
    e(f"v_add_f32 v{vT+3}, v{vT+3}, v{vT+2}")
    bf16r(vT + 3, vT + 3)
    e(f"v_mul_f32 v{vT+4}, v{vT+3}, v{vT+3}")
    e(f"v_mul_f32 v{vT+4}, v{vT+4}, v{vT+3}")
    e(f"v_mov_b32 v{vT+5}, {f32(0.044715)}")
    e(f"v_fma_f32 v{vT+4}, v{vT+4}, v{vT+5}, v{vT+3}")
    e(f"v_mul_f32 v{vT+4}, {f32(-2.0*0.7978845608028654*1.4426950408889634)}, v{vT+4}")
    e(f"v_exp_f32 v{vT+4}, v{vT+4}")
    e("s_nop 0")
    e(f"v_add_f32 v{vT+4}, 1.0, v{vT+4}")
    e(f"v_rcp_f32 v{vT+4}, v{vT+4}")
    e("s_nop 0")
    e(f"v_mul_f32 v{vT+3}, v{vT+3}, v{vT+4}")
    e(f"v_cvt_pk_bf16_f32 v{vT+3}, v{vT+3}, v{vT+3}")
    e(f"ds_write_b32 v{vT}, v{vT+3} offset:{L_H + k*256}")
e("s_waitcnt lgkmcnt(0)")
e("s_lshl_b32 s8, s14, 7")
e(f"v_lshrrev_b32 v{vT}, 3, v{vN}")
e(f"v_lshlrev_b32 v{vT}, 6, v{vT}")
e(f"v_add_u32 v{vT}, s8, v{vT}")
e(f"v_add_u32 v{vT}, v{vT}, v{vG}")
e(f"v_lshlrev_b32 v{vT}, 2, v{vT}")
for i in range(16):
    e(f"ds_read_b32 v{108+i}, v{vT} offset:{L_H + i*16}")
e("s_movk_i32 s9, 1280")
e(f"v_mul_lo_u32 v{vT+1}, v{vG}, s9")
e(f"v_lshl_add_u32 v{vT+1}, v{vN}, 4, v{vT+1}")
e(f"v_add_u32 v{vT+1}, {L_BIG}, v{vT+1}")
e(f"v_add_u32 v{vT+2}, {8*5120}, v{vT+1}")
for k in range(20):
    e(f"v_mov_b32 v{48+k}, 0")
def w2read(i):
    base = 68 + 20 * (i % 2)
    ad, ii = (vT + 1, i) if i < 8 else (vT + 2, i - 8)
    for blk in range(5):
        e(f"ds_read_b128 v[{base+4*blk}:{base+4*blk+3}], v{ad} offset:{ii*5120 + blk*256}")
w2read(0)
for i in range(16):
    base = 68 + 20 * (i % 2)
    if i < 15:
        w2read(i + 1)
        e("s_waitcnt lgkmcnt(5)")
    else:
        e("s_waitcnt lgkmcnt(0)")
    for r in range(4):
        e(f"v_and_b32 v{vA+r}, v{108+i}, v{vM8+r}")
    e("s_nop 1")
    for blk in range(5):
        e(f"v_mfma_f32_16x16x32_bf16 v[{48+4*blk}:{48+4*blk+3}], v[{vA}:{vA+3}], v[{base+4*blk}:{base+4*blk+3}], v[{48+4*blk}:{48+4*blk+3}]")
    e("s_nop 7")
e(f"v_lshrrev_b32 v{vT}, 1, v{vG}")
e("s_lshl_b32 s8, s14, 1")
e(f"v_add_u32 v{vT}, s8, v{vT}")
e(f"s_mov_b32 s9, {WS_BATCH}")
e(f"v_mul_lo_u32 v{vT}, v{vT}, s9")
e("s_add_u32 s8, s7, 32")
e("s_mul_i32 s8, s8, 2560")
e(f"v_add_u32 v{vT}, s8, v{vT}")
e(f"v_lshl_add_u32 v{vT}, v{vN}, 5, v{vT}")
e(f"v_and_b32 v{vT+1}, 1, v{vG}")
e(f"v_lshl_add_u32 v{vT}, v{vT+1}, 4, v{vT}")
for blk in range(5):
    e(f"global_store_dwordx4 v{vT}, v[{48+4*blk}:{48+4*blk+3}], s[40:41] offset:{blk*512} sc1")
e("s_waitcnt vmcnt(0)")
e("s_mov_b64 exec, 3")
e("s_lshl_b32 s8, s14, 1")
e(f"v_add_u32 v{vT}, s8, v{vLANE}")
e(f"v_lshlrev_b32 v{vT+3}, 2, v{vT}")
e(f"v_mov_b32 v{vT+1}, 1")
e(f"global_atomic_add v{vT+2}, v{vT+3}, v{vT+1}, s[38:39] sc0")
e("s_waitcnt vmcnt(0)")
e(f"v_lshlrev_b32 v{vT+1}, v{vT}, v{vT+1}")
e(f"v_cmp_eq_u32 vcc, 58, v{vT+2}")
e("s_nop 1")
e(f"v_cndmask_b32 v{vT+1}, 0, v{vT+1}, vcc")
e(f"v_mov_b32 v{vT}, 0")
e(f"ds_or_b32 v{vT}, v{vT+1} offset:{L_FLAG}")
e("s_mov_b64 exec, -1")
e("s_setprio 0")
e("s_mov_b32 s13, 16")
e(f"v_lshlrev_b32 v{vT}, 4, v{vN}")
e(f"ds_read_b128 v[{vQ}:{vQ+3}], v{vT} offset:{L_QB}")
e("s_branch L_kinit")
lab("L_mid0")
e("s_mov_b32 s12, 0")
e("s_branch L_mid")
lab("L_mid1")
e("s_mov_b32 s12, 1")
lab("L_mid")
stamp(3)
wave_allreduce("v_max_f32", vMx)
e("s_lshl_b32 s8, s3, 2")
e(f"v_mov_b32 v{vT}, s8")
e("s_mov_b64 exec, 1")
e(f"ds_write_b32 v{vT}, v{vMx} offset:{L_ML}")
e("s_mov_b64 exec, -1")
e("s_waitcnt lgkmcnt(0)")
e("s_barrier")
for k in range(4):
    e(f"ds_read_b128 v[{vA+4*(k%2)}:{vA+4*(k%2)+3}], v{vZero} offset:{L_ML+16*k}")
    if k % 2 == 1:
        e("s_waitcnt lgkmcnt(0)")
        for j in range(0, 8, 2):
            e(f"v_max3_f32 v{vMx}, v{vMx}, v{vA+j}, v{vA+j+1}")

if OPT["rk"]:
    e("s_cmp_lg_u32 s3, 15")
    e("s_cbranch_scc1 L_tk_done")
    e("s_setprio 3")
    e("s_mov_b64 exec, 1")
    e(f"v_mov_b32 v{vT}, 64")
    e(f"global_atomic_add v{vT+1}, v{vT}, v{vOne}, s[38:39] sc0")
    e("s_waitcnt vmcnt(0)")
    e(f"v_readfirstlane_b32 s8, v{vT+1}")
    e("s_mov_b32 s9, 16")
    for r, t in (("r3", "t3"), ("r2", "t2"), ("r1", "t1")):
        e(f"s_cmp_lt_u32 s8, {OPT[r]}")
        e(f"s_cselect_b32 s9, {OPT[t]}, s9")
    e(f"v_mov_b32 v{vT+1}, s9")
    e(f"ds_write_b32 v{vZero}, v{vT+1} offset:{L_T}")
    e("s_mov_b64 exec, -1")
    e("s_setprio 0")
    lab("L_tk_done")
if not OPT['woearly']: wo_loads()
if OPT["rk"]:
    e(f"s_cmp_lt_u32 s{sA[0]}, 1024")
    e("s_cbranch_scc1 L_vgo")
    e("s_mov_b32 s6, 0")
    lab("L_tspin")
    e(f"ds_read_b32 v{vT+1}, v{vZero} offset:{L_T}")
    e("s_waitcnt lgkmcnt(0)")
    e(f"v_readfirstlane_b32 s8, v{vT+1}")
    e("s_add_u32 s6, s6, 1")
    e("s_cmp_lg_u32 s8, 0")
    e("s_cbranch_scc1 L_tspin_done")
    e("s_sleep 1")
    e("s_cmp_lt_u32 s6, 0x100000")
    e("s_cbranch_scc1 L_tspin")
    lab("L_tspin_done")
    e("s_cmp_ge_u32 s3, s8")
    e("s_cbranch_scc1 L_vdone")
    grab()
    for st in range(2):
        e("s_waitcnt lgkmcnt(0)")
        e(f"v_readfirstlane_b32 s{sA[st]}, v{vNext}")
        e("s_nop 3")
        issue_group(st, sA[st])
        grab()
    lab("L_vgo")
e("s_cmp_eq_u32 s12, 1")
e("s_cbranch_scc1 L_v1")

def v_step(st):
    lab(f"L_v{st}")
    e(f"s_cmp_ge_u32 s{sA[st]}, 512")
    e("s_cbranch_scc1 L_vdone")
    e(f"s_sub_u32 s8, s{sA[st]}, 256")
    e("s_lshl_b32 s8, s8, 6")
    e(f"v_add_u32 v{vT}, s8, v{vSbV}")
    e(f"ds_read_b32 v{vP}, v{vT}")
    if OPT["rk"]: e(f"ds_read_b32 v{vT+1}, v{vZero} offset:{L_T}")
    e("s_waitcnt lgkmcnt(0)")
    e(f"v_readfirstlane_b32 s{sA[st]}, v{vNext}")
    if OPT["rk"]: e(f"v_readfirstlane_b32 s10, v{vT+1}")
    e(f"v_sub_f32 v{vP}, v{vP}, v{vMx}")
    e(f"v_exp_f32 v{vP}, v{vP}")
    e("s_nop 0")
    e(f"v_add_f32 v{vL}, v{vL}, v{vP}")
    e(f"v_cvt_pk_bf16_f32 v{vP}, v{vP}, v{vP}")
    e(f"s_cmp_lt_u32 s{sA[1-st]}, 512")
    e(f"s_cbranch_scc1 L_vw{st}")
    e("s_waitcnt vmcnt(0)")
    lab(f"L_vw{st}")
    e("s_waitcnt vmcnt(4)")
    e("s_nop 0")
    for i in range(4):
        a = vA + 4 * (i % 2)
        for r in range(4):
            e(f"v_and_b32_dpp v{a+r}, v{vP}, v{vM+r} row_newbcast:{i} row_mask:0xf bank_mask:0xf")
        if i % 2 == 1:
            e("s_nop 0")
            for u in range(2):
                aa = vA + 4 * u
                r0 = vRING + 16 * st + 4 * (i - 1 + u)
                e(f"v_mfma_f32_16x16x32_bf16 v[{vO}:{vO+3}], v[{aa}:{aa+3}], v[{r0}:{r0+3}], v[{vO}:{vO+3}]")
    issue_group(st, sA[st])
    if OPT["rk"]:
        e("s_sub_u32 s10, s10, 1")
        e("s_cmp_gt_u32 s3, s10")
        e(f"s_cbranch_scc0 L_vg{st}")
        e(f"v_mov_b32 v{vNext}, 1024")
        e(f"s_branch L_vn{st}")
        lab(f"L_vg{st}")
    grab()
    lab(f"L_vn{st}")

v_step(0)
v_step(1)
e("s_branch L_v0")
lab("L_vdone")
wave_allreduce("v_add_f32", vL)
e(f"v_mul_f32 v{vL}, 0.25, v{vL}") if False else e(f"v_mul_f32 v{vL}, {f32(0.25)}, v{vL}")

stamp(4)
e(f"v_lshlrev_b32 v{vT+2}, 5, v{vN}")
e(f"v_lshl_add_u32 v{vT+2}, v{vG}, 4, v{vT+2}")
e("s_lshl_b32 s8, s3, 9")
e(f"v_add_u32 v{vT+2}, s8, v{vT+2}")
e("s_lshl_b32 s8, s3, 2")
e(f"v_mov_b32 v{vT+3}, s8")
e("s_nop 7")
e("s_mov_b32 exec_hi, 0")
e(f"ds_write_b128 v{vT+2}, v[{vO}:{vO+3}] offset:{L_QP}")
e("s_mov_b64 exec, 1")
e(f"ds_write_b32 v{vT+3}, v{vL} offset:{L_ML+64}")
e("s_mov_b64 exec, -1")
e("s_waitcnt lgkmcnt(0)")
e("s_barrier")
e("s_cmp_ge_u32 s3, 2")
e("s_cbranch_scc1 L_c_skip")
for k in range(4):
    e(f"ds_read_b128 v[{vRING+4*k}:{vRING+4*k+3}], v{vZero} offset:{L_ML+64+16*k}")
e(f"v_lshlrev_b32 v{vT}, 2, v0")
for k in range(16):
    e(f"ds_read_b32 v{vRING+16+k}, v{vT} offset:{L_QP+k*512}")
e("s_waitcnt lgkmcnt(0)")
for k in range(1, 16):
    e(f"v_add_f32 v{vRING}, v{vRING}, v{vRING+k}")
    e(f"v_add_f32 v{vRING+16}, v{vRING+16}, v{vRING+16+k}")
e(f"v_rcp_f32 v{vT+4}, v{vRING}")
e("s_nop 0")
e(f"v_mul_f32 v{vT+5}, v{vRING+16}, v{vT+4}")
e(f"v_fma_f32 v{vT+3}, -v{vT+5}, v{vRING}, v{vRING+16}")
e(f"v_fma_f32 v{vT+3}, v{vT+3}, v{vT+4}, v{vT+5}")
e(f"v_cvt_pk_bf16_f32 v{vT+3}, v{vT+3}, v{vT+3}")
e(f"ds_write_b32 v{vT}, v{vT+3} offset:{L_OB}")
e("s_waitcnt lgkmcnt(0)")
lab("L_c_skip")
e("s_barrier")

e("s_lshl_b32 s8, s3, 3")
e(f"v_add_u32 v{vT}, s8, v{vG}")
e(f"v_lshlrev_b32 v{vT}, 2, v{vT}")
e(f"ds_read_b32 v{vT+1}, v{vT} offset:{L_OB}")
e(f"ds_read_b32 v{vT+2}, v{vT} offset:{L_OB+16}")
for k in range(20):
    e(f"v_mov_b32 v{vPACC+k}, 0")
e("s_waitcnt lgkmcnt(0)")
for i in range(2):
    a = vA + 4 * i
    for r in range(4):
        e(f"v_and_b32 v{a+r}, v{vT+1+i}, v{vM+r}")
e("s_waitcnt vmcnt(0)")
e("s_nop 0")
for i in range(2):
    a = vA + 4 * i
    for blk in range(5):
        k = i * 5 + blk
        e(f"v_mfma_f32_16x16x32_bf16 v[{vPACC+4*blk}:{vPACC+4*blk+3}], v[{a}:{a+3}], v[{vW+4*k}:{vW+4*k+3}], v[{vPACC+4*blk}:{vPACC+4*blk+3}]")
e(f"v_lshlrev_b32 v{vT+2}, 5, v{vN}")
e(f"v_lshl_add_u32 v{vT+2}, v{vG}, 4, v{vT+2}")
e("s_mul_i32 s8, s3, 2560")
e(f"v_add_u32 v{vT+2}, s8, v{vT+2}")
e("s_nop 7")
e("s_mov_b32 exec_hi, 0")
for blk in range(5):
    e(f"ds_write_b128 v{vT+2}, v[{vPACC+4*blk}:{vPACC+4*blk+3}] offset:{L_BIG+blk*512}")
e("s_mov_b64 exec, -1")
e("s_waitcnt lgkmcnt(0)")
e("s_barrier")
e("s_cmp_ge_u32 s3, 3")
e("s_cbranch_scc1 L_s_skip")
e("v_cmp_gt_u32 vcc, 160, v0")
e("s_and_saveexec_b64 s[12:13], vcc")
e("s_cbranch_execz L_s_skip2")
e(f"v_lshlrev_b32 v{vT}, 4, v0")
e(f"v_add_u32 v{vT+1}, {L_BIG}, v{vT}")
for k in range(16):
    e(f"ds_read_b128 v[{vRING+4*k}:{vRING+4*k+3}], v{vT+1} offset:{k*2560}")
e(f"s_mul_i32 s8, s4, {WS_BATCH}")
e("s_mul_i32 s9, s5, 2560")
e("s_add_u32 s8, s8, s9")
e(f"v_add_u32 v{vT}, s8, v{vT}")
e("s_waitcnt lgkmcnt(0)")
for k in range(1, 16):
    for r in range(4):
        e(f"v_add_f32 v{vRING+r}, v{vRING+r}, v{vRING+4*k+r}")
e(f"global_store_dwordx4 v{vT}, v[{vRING}:{vRING+3}], s[40:41] sc1")
e("s_waitcnt vmcnt(0)")
lab("L_s_skip2")
e("s_mov_b64 exec, s[12:13]")
lab("L_s_skip")
e("s_barrier")
e("s_cmp_lg_u32 s3, 0")
e("s_cbranch_scc1 L_sig_done")
e("s_mov_b64 exec, 1")
stamp(5)
e("s_lshl_b32 s8, s4, 2")
e(f"v_mov_b32 v{vT}, s8")
e(f"v_mov_b32 v{vT+1}, 1")
e(f"global_atomic_add v{vT+2}, v{vT}, v{vT+1}, s[38:39] sc0")
e("s_waitcnt vmcnt(0)")
e(f"v_readfirstlane_b32 s8, v{vT+2}")
e("s_lshl_b32 s9, 1, s4")
e("s_cmp_eq_u32 s8, 58")
e("s_cselect_b32 s9, s9, 0")
e(f"v_mov_b32 v{vT}, 0")
e(f"v_mov_b32 v{vT+1}, s9")
e(f"ds_or_b32 v{vT}, v{vT+1} offset:{L_FLAG}")
e("s_waitcnt lgkmcnt(0)")
e("s_mov_b64 exec, -1")
lab("L_sig_done")
e("s_barrier")
e(f"v_mov_b32 v{vT}, 0")
e(f"ds_read_b32 v{vT+1}, v{vT} offset:{L_FLAG}")
e("s_waitcnt lgkmcnt(0)")
e(f"v_readfirstlane_b32 s7, v{vT+1}")
e("s_cmp_eq_u32 s7, 0")
e("s_cbranch_scc1 L_end2")

lab("L_fin_loop")
e("s_ff1_i32_b32 s14, s7")
e("s_lshl_b32 s8, 1, s14")
e("s_xor_b32 s7, s7, s8")
e(f"s_mul_i32 s8, s14, {WS_BATCH}")
e("s_add_u32 s10, s40, s8")
e("s_addc_u32 s11, s41, 0")
srd(sWS, 10, 11, WS_BATCH)
e(f"v_mul_u32_u24 v{vT}, 52429, v0")
e(f"v_lshrrev_b32 v{vT}, 23, v{vT}")
e(f"v_mul_u32_u24 v{vT+1}, 160, v{vT}")
e(f"v_sub_u32 v{vT+1}, v0, v{vT+1}")
e(f"v_lshlrev_b32 v{vT+1}, 4, v{vT+1}")
e("s_movk_i32 s9, 2560")
e(f"v_mul_lo_u32 v{vT+2}, v{vT}, s9")
e(f"v_add_u32 v{vT+2}, v{vT+2}, v{vT+1}")
e("v_cmp_gt_u32 vcc, 960, v0")
e("s_and_saveexec_b64 s[12:13], vcc")
e("s_cbranch_execz L_fin_a")
for j in range(10):
    e(f"s_mov_b32 s6, {j*6*2560}")
    e(f"buffer_load_dwordx4 v[{vRING+4*j}:{vRING+4*j+3}], v{vT+2}, s[{sWS}:{sWS+3}], s6 offen sc1")
e(f"v_cmp_gt_u32 vcc, 2, v{vT}")
e("s_waitcnt vmcnt(0)")
S4, Z4 = vRING, vRING + 24
for j in range(1, 5):
    for r in range(4):
        e(f"v_add_f32 v{S4+r}, v{S4+r}, v{vRING+4*j+r}")
for j in range(7, 10):
    for r in range(4):
        e(f"v_add_f32 v{Z4+r}, v{Z4+r}, v{vRING+4*j+r}")
for r in range(4):
    e(f"v_cndmask_b32 v{vT+4}, 0, v{vRING+20+r}, vcc")
    e(f"v_cndmask_b32 v{vT+5}, v{vRING+20+r}, 0, vcc")
    e(f"v_add_f32 v{S4+r}, v{S4+r}, v{vT+4}")
    e(f"v_add_f32 v{Z4+r}, v{Z4+r}, v{vT+5}")
e("s_movk_i32 s9, 5120")
e(f"v_mul_lo_u32 v{vT+2}, v{vT}, s9")
e(f"v_add_u32 v{vT+2}, v{vT+2}, v{vT+1}")
e(f"ds_write_b128 v{vT+2}, v[{S4}:{S4+3}] offset:{L_BIG}")
e(f"ds_write_b128 v{vT+2}, v[{Z4}:{Z4+3}] offset:{L_BIG+2560}")
e("s_waitcnt lgkmcnt(0)")
lab("L_fin_a")
e("s_mov_b64 exec, s[12:13]")
e("s_barrier")
e("v_cmp_gt_u32 vcc, 640, v0")
e("s_and_saveexec_b64 s[12:13], vcc")
e("s_cbranch_execz L_fin_b")
e(f"v_lshlrev_b32 v{vT}, 2, v0")
for k in range(6):
    e(f"ds_read_b32 v{vRING+k}, v{vT} offset:{L_BIG+k*5120}")
    e(f"ds_read_b32 v{vRING+8+k}, v{vT} offset:{L_BIG+k*5120+2560}")
e(f"v_lshlrev_b32 v{vT+1}, 1, v0")
e(f"global_load_ushort v{vT+2}, v{vT+1}, s[34:35]")
e("s_mul_i32 s8, s14, 1280")
e(f"v_add_u32 v{vT+1}, s8, v{vT+1}")
e(f"global_load_ushort v{vT+3}, v{vT+1}, s[16:17]")
e("s_waitcnt lgkmcnt(0)")
for k in range(1, 6):
    e(f"v_add_f32 v{vRING}, v{vRING}, v{vRING+k}")
    e(f"v_add_f32 v{vRING+8}, v{vRING+8}, v{vRING+8+k}")
bf16r(vRING, vRING)
bf16r(vRING + 8, vRING + 8)
e("s_waitcnt vmcnt(0)")
e(f"v_lshlrev_b32 v{vT+2}, 16, v{vT+2}")
e(f"v_lshlrev_b32 v{vT+3}, 16, v{vT+3}")
e(f"v_add_f32 v{vRING+8}, v{vRING+8}, v{vT+2}")
bf16r(vRING + 8, vRING + 8)
e(f"v_mul_f32 v{vT+4}, {f32(-1.4426950408889634)}, v{vRING+8}")
e(f"v_exp_f32 v{vT+4}, v{vT+4}")
e("s_nop 0")
e(f"v_add_f32 v{vT+4}, 1.0, v{vT+4}")
e(f"v_rcp_f32 v{vT+4}, v{vT+4}")
e("s_nop 0")
e(f"v_mul_f32 v{vRING+8}, v{vRING+8}, v{vT+4}")
bf16r(vRING + 8, vRING + 8)
e(f"v_mul_f32 v{vRING}, v{vRING}, v{vRING+8}")
bf16r(vRING, vRING)
e(f"v_add_f32 v{vRING}, v{vRING}, v{vT+3}")
e(f"v_cvt_pk_bf16_f32 v{vRING}, v{vRING}, v{vRING}")
e(f"global_store_short v{vT+1}, v{vRING}, s[36:37]")
e("s_waitcnt vmcnt(0)")
lab("L_fin_b")
e("s_mov_b64 exec, s[12:13]")
e("s_barrier")
e("s_cmp_lg_u32 s7, 0")
e("s_cbranch_scc1 L_fin_loop")
lab("L_end2")
if OPT["stamps"]:
    stamp(6)
    e("s_cmp_lg_u32 s3, 0")
    e("s_cbranch_scc1 L_end")
    e("s_mov_b64 exec, 1")
    e("s_lshl_b32 s8, s2, 6")
    e(f"s_add_u32 s8, s8, {32<<20}")
    e(f"v_mov_b32 v{vT}, s8")
    for j in range(7):
        e(f"v_mov_b32 v{vT+2}, s{86+2*j}")
        e(f"v_mov_b32 v{vT+3}, s{87+2*j}")
        e(f"global_store_dwordx2 v{vT}, v[{vT+2}:{vT+3}], s[40:41] offset:{8*j}")
        e("s_nop 1")
lab("L_end")
e("s_endpgm")

out += "\n".join(lines) + "\n"
out += f""".section .rodata,"a"
.p2align 6
.amdhsa_kernel {NAME}_kernel
  .amdhsa_next_free_vgpr 128
  .amdhsa_next_free_sgpr 102
  .amdhsa_accum_offset 128
  .amdhsa_group_segment_fixed_size 0
  .amdhsa_kernarg_size 104
  .amdhsa_user_sgpr_count 2
  .amdhsa_user_sgpr_kernarg_segment_ptr 1
  .amdhsa_system_sgpr_workgroup_id_x 1
.end_amdhsa_kernel
"""
open(sys.argv[1], "w").write(out)
```
